```python
import torch

def _softmax(x, axis=-1):
    return torch.softmax(x, dim=axis)
def _gelu(x):
    return torch.nn.functional.gelu(x, approximate="tanh")
def _silu(x):
    return torch.nn.functional.silu(x)
def _sigmoid(x):
    return torch.sigmoid(x)
def _layernorm(x, axis=-1, eps=1e-5):
    m = x.mean(dim=axis, keepdim=True)
    v = x.var(dim=axis, keepdim=True, unbiased=False)
    return (x - m) / torch.sqrt(v + eps)
def _scatter_add(tgt, idx, src, axis=0):
    return tgt.clone().index_add_(axis, idx, src)
def _segment_sum(src, seg, n):
    out = torch.zeros((n,) + src.shape[1:], dtype=src.dtype)
    return out.index_add_(0, seg, src)
def _pad(x, pw):
    flat = tuple(v for pair in reversed(pw) for v in pair)
    return torch.nn.functional.pad(x, flat)

kernel_name = 'parallel_sum__gqa_block_cached__glu_gated_geglu__decode'

def setup_inputs():

    _w = (lambda a: (lambda t: t.to(torch.bfloat16) if t.is_floating_point() else t)(torch.as_tensor(a)))
    def _A_setup():
        B, Sq, D = 1, 1, 576
        Hq, Hkv, Sk, Dh = 32, 16, 65536, 128
        assert Hq % Hkv == 0, (Hq, Hkv)
        return {
            "x": _w((lambda *s: torch.randn(*s, dtype=torch.bfloat16) * 0.05)(B, Sq, D)),
            "k_cache": _w((lambda *s: torch.randn(*s, dtype=torch.bfloat16) * 1.6)(B, Hkv, Sk, Dh)),
            "v_cache": _w((lambda *s: torch.randn(*s, dtype=torch.bfloat16) * 1.6)(B, Hkv, Sk, Dh)),
            "wq": _w((lambda *s: torch.randn(*s, dtype=torch.bfloat16) * 1.6)(D, Hq * Dh) * (D ** -0.5)),
            "wo": _w((lambda *s: torch.randn(*s, dtype=torch.bfloat16) * 1.6)(Hq * Dh, D) * ((Hq * Dh) ** -0.5)),
        }
    _A_in = _A_setup()

    def _B_setup():
        B, S, Dm, Df = 1, 1, 576, 4608
        return {
            "x": _w((lambda *s: torch.randn(*s, dtype=torch.bfloat16) * 0.05)(B, S, Dm)),
            "w_gate": _w((lambda *s: torch.randn(*s, dtype=torch.bfloat16) * 0.8)(Dm, Df) * (Dm ** -0.5)),
            "w_up": _w((lambda *s: torch.randn(*s, dtype=torch.bfloat16) * 0.8)(Dm, Df) * (Dm ** -0.5)),
            "w_down": _w((lambda *s: torch.randn(*s, dtype=torch.bfloat16) * 0.8)(Df, Dm) * (Df ** -0.5)),
        }
    _B_in = _B_setup()

    return {
        "A_x": _A_in["x"],
        "A_k_cache": _A_in["k_cache"],
        "A_v_cache": _A_in["v_cache"],
        "A_wq": _A_in["wq"],
        "A_wo": _A_in["wo"],
        "B_x": _B_in["x"],
        "B_w_gate": _B_in["w_gate"],
        "B_w_up": _B_in["w_up"],
        "B_w_down": _B_in["w_down"],
    }

def reference(A_x, A_k_cache, A_v_cache, A_wq, A_wo, B_x, B_w_gate, B_w_up, B_w_down):
    def _A_ref(x, k_cache, v_cache, wq, wo):
        B, Sq, D = x.shape
        Hq, Dh = 32, 128
        Hkv = k_cache.shape[1]
        rep = Hq // Hkv
        q = (lambda x, *d: x.permute(*d))((x @ wq).reshape(B, Sq, Hq, Dh), 0, 2, 1, 3)
        k = (lambda x, n, axis: torch.repeat_interleave(x, n, dim=axis))(k_cache, rep, axis=1)
        v = (lambda x, n, axis: torch.repeat_interleave(x, n, dim=axis))(v_cache, rep, axis=1)
        scores = torch.einsum("bhqd,bhkd->bhqk", q, k) * (Dh ** -0.5)
        p = _softmax(scores, axis=-1)
        o = torch.einsum("bhqk,bhkd->bhqd", p, v)
        return (lambda x, *d: x.permute(*d))(o, 0, 2, 1, 3).reshape(B, Sq, Hq * Dh) @ wo

    def _B_ref(x, w_gate, w_up, w_down):
        g = torch.einsum("bsd,df->bsf", x, w_gate)
        u = torch.einsum("bsd,df->bsf", x, w_up)
        h = _gelu(g) * u
        return torch.einsum("bsf,fd->bsd", h, w_down)

    x = A_x
    xn = _layernorm(x, axis=-1)
    return x + _A_ref(xn, A_k_cache, A_v_cache, A_wq, A_wo) + _B_ref(xn, B_w_gate, B_w_up, B_w_down)
```

```python
import re
KNAME = "parallel_sum__gqa_block_cached__glu_gated_geglu__decode_kernel"

TRANS = ("v_exp_f32", "v_log_f32", "v_rcp_f32", "v_rsq_f32", "v_sqrt_f32", "v_sin_f32", "v_cos_f32")

def regs_of(tok):
    tok = tok.strip()
    neg = tok.lstrip("-")
    if neg.startswith("abs(") and neg.endswith(")"): neg = neg[4:-1]
    if neg.startswith("|") and neg.endswith("|"): neg = neg[1:-1]
    m = re.fullmatch(r"([vas])(\d+)", neg)
    if m: return {(m.group(1), int(m.group(2)))}
    m = re.fullmatch(r"([vas])\[(\d+):(\d+)\]", neg)
    if m: return {(m.group(1), i) for i in range(int(m.group(2)), int(m.group(3)) + 1)}
    if neg == "vcc": return {("s", 1000), ("s", 1001)}
    if neg == "exec": return {("s", 1002), ("s", 1003)}
    if neg == "m0": return {("s", 1004)}
    return set()

class Ins:
    def __init__(self, text):
        self.text = text
        t = text.split(";")[0].strip()
        self.label = t.endswith(":") and " " not in t
        self.directive = t.startswith(".")
        self.empty = t == ""
        self.mn = ""; self.ops = []; self.mods = ""
        self.defs = set(); self.uses = set()
        if self.label or self.directive or self.empty: return
        parts = t.split(None, 1)
        self.mn = parts[0]
        rest = parts[1] if len(parts) > 1 else ""
        ops = []; cur = ""; depth = 0
        for ch in rest:
            if ch == "[": depth += 1
            if ch == "]": depth -= 1
            if ch == "," and depth == 0: ops.append(cur.strip()); cur = ""
            else: cur += ch
        if cur.strip(): ops.append(cur.strip())
        if ops:
            last = ops[-1].split(None, 1)
            ops[-1] = last[0]
            self.mods = last[1] if len(last) > 1 else ""
        self.ops = ops
        mn = self.mn
        self.is_mfma = mn.startswith("v_mfma")
        self.is_valu = mn.startswith("v_") and not self.is_mfma
        self.is_trans = any(mn.startswith(x) for x in TRANS)
        self.is_dpp = self.is_valu and any(k in self.mods for k in ("quad_perm", "row_", "wave_"))
        self.is_permlane = mn.startswith("v_permlane")
        self.is_readlane = mn.startswith("v_readlane") or mn.startswith("v_readfirstlane")
        self.is_writelane = mn.startswith("v_writelane")
        self.is_dot = mn.startswith("v_dot")
        self.is_vmem = mn.startswith("buffer_") or mn.startswith("global_")
        self.is_ds = mn.startswith("ds_")
        self.is_salu = mn.startswith("s_")
        self.is_store = self.is_vmem and ("store" in mn or "atomic" in mn)
        R = [regs_of(o) for o in ops]
        allr = set().union(*R) if R else set()
        if self.is_mfma:
            self.defs = R[0]; self.uses = set().union(*R[1:]); self.srcA = R[1]; self.srcB = R[2]; self.srcC = R[3]
        elif self.is_valu:
            if mn.startswith("v_cmp"):
                self.defs = R[0]; self.uses = set().union(*R[1:])
            elif mn.startswith("v_permlane") and "swap" in mn:
                self.defs = R[0] | R[1]; self.uses = R[0] | R[1]
            elif mn.startswith("v_add_co") or mn.startswith("v_addc_co") or mn.startswith("v_sub_co"):
                self.defs = R[0] | R[1]; self.uses = set().union(*R[2:])
            else:
                self.defs = R[0]; self.uses = set().union(*R[1:]) if len(R) > 1 else set()
                if mn.startswith("v_dot2c") or mn.startswith("v_fmac") or mn.startswith("v_writelane") or self.is_dpp:
                    self.uses |= R[0]
                if mn.startswith("v_cndmask") and len(ops) == 3: self.uses |= regs_of("vcc")
        elif self.is_vmem:
            if "store" in mn or ("atomic" in mn and "sc0" not in self.mods):
                self.uses = allr
            elif "atomic" in mn:
                self.uses = allr; self.defs = R[0]
            elif " lds" in (" " + self.mods) or "_lds_" in mn:
                self.uses = allr | regs_of("m0")
            else:
                self.defs = R[0]; self.uses = set().union(*R[1:])
        elif self.is_ds:
            if mn.startswith("ds_read") or mn.startswith("ds_bpermute") or mn.startswith("ds_permute") or mn.startswith("ds_swizzle") or "_rtn" in mn:
                self.defs = R[0]; self.uses = set().union(*R[1:])
            else:
                self.uses = allr
        elif self.is_salu:
            if mn.startswith("s_cmp") or mn.startswith("s_cbranch") or mn in ("s_branch", "s_nop", "s_waitcnt", "s_barrier", "s_sleep", "s_endpgm", "s_setprio", "s_bitcmp1_b32", "s_bitcmp0_b32"):
                self.uses = allr
            else:
                self.defs = R[0] if R else set(); self.uses = set().union(*R[1:]) if len(R) > 1 else set()
                if "saveexec" in mn: self.defs |= regs_of("exec"); self.uses |= regs_of("exec")
    def states(self):
        if self.label or self.directive or self.empty: return 0
        if self.mn == "s_nop": return int(self.ops[0], 0) + 1
        return 1

def vgprs(s): return {r for r in s if r[0] in "va"}
def sgprs(s): return {r for r in s if r[0] == "s"}

def need(p, c):
    n = 0
    if p.is_valu:
        dv = vgprs(p.defs); ds_ = sgprs(p.defs)
        if c.is_valu:
            if p.is_trans and not c.is_trans and (dv & c.uses): n = max(n, 1)
            if p.is_trans and c.is_trans and (dv & c.uses): n = max(n, 1)
            if c.is_dpp and (dv & c.uses): n = max(n, 2)
            if c.is_permlane and (dv & c.uses): n = max(n, 2)
            if c.is_readlane and (dv & c.uses): n = max(n, 1)
            if ds_ & c.uses:
                n = max(n, 4 if (c.is_readlane or c.is_writelane) and not c.mn.startswith("v_readfirstlane") else 2)
            if p.is_dot and (dv & (c.uses | c.defs)):
                if c.mn != p.mn: n = max(n, 3)
                else:
                    srcAB = set()
                    for o in c.ops[1:3]: srcAB |= regs_of(o)
                    if dv & srcAB: n = max(n, 3)
        if c.is_mfma and (dv & c.uses): n = max(n, 2)
        if c.is_vmem and (ds_ & c.uses): n = max(n, 5)
        if (c.is_vmem or c.is_ds) and p.is_dot and (dv & c.uses): n = max(n, 3)
        if c.is_salu and (ds_ & c.uses) and p.is_readlane: n = max(n, 1)
    if p.is_mfma:
        passes = 8 if "32x32" in p.mn else 4
        w_ab = 12 if passes == 8 else 8
        w_c = 10 if passes == 8 else 6
        w_war = 7 if passes == 8 else 3
        if c.is_mfma:
            if p.defs & (c.srcA | c.srcB): n = max(n, w_ab)
            if (p.defs & c.srcC) and p.defs != c.srcC: n = max(n, w_c)
            if (p.defs & c.defs) and not (p.defs & c.srcC) : n = max(n, w_c)
        elif c.is_valu:
            if p.defs & (c.uses | c.defs): n = max(n, w_ab)
            if p.srcC & c.defs: n = max(n, w_war)
        elif c.is_vmem or c.is_ds:
            if p.defs & (c.uses | c.defs): n = max(n, w_ab)
    if p.is_store and ("x4" in p.mn or "x3" in p.mn) and c.is_valu:
        data = regs_of(p.ops[0])
        if data & c.defs: n = max(n, 2)
    if p.is_ds and ("b128" in p.mn or "b96" in p.mn) and p.mn.startswith("ds_write") and c.is_valu:
        data = set().union(*[regs_of(o) for o in p.ops[1:]])
        if data & c.defs: n = max(n, 2)
    if p.is_salu and (regs_of("m0") & p.defs) and (c.is_vmem and ("lds" in c.mods or "_lds_" in c.mn)): n = max(n, 1)
    return n

def fix_hazards(lines, verbose=False):
    ins = [Ins(l) for l in lines]
    inserted = 0
    for it in range(50):
        labels = {i.text.split(":")[0].strip(): k for k, i in enumerate(ins) if i.label}
        changed = False
        k = 0
        while k < len(ins):
            p = ins[k]
            if p.states() and (p.is_valu or p.is_mfma or p.is_store or p.is_ds or p.is_salu):
                stack = [(k + 1, 0)]
                seen = set()
                fix = None
                while stack and fix is None:
                    j, d = stack.pop()
                    while j < len(ins) and d < 20:
                        if (j, d) in seen: break
                        seen.add((j, d))
                        c = ins[j]
                        if c.states():
                            nd = need(p, c)
                            if nd > d:
                                fix = (j, nd - d); break
                            if c.mn in ("s_endpgm",): break
                            if c.mn == "s_branch":
                                t = c.ops[0]
                                j = labels[t]; d += 1; continue
                            if c.mn.startswith("s_cbranch"):
                                stack.append((labels[c.ops[0]], d + 1))
                            d += c.states()
                        j += 1
                if fix is not None:
                    j, cnt = fix
                    ins.insert(j, Ins(f"s_nop {cnt - 1}"))
                    inserted += 1; changed = True
                    labels = {i.text.split(":")[0].strip(): kk for kk, i in enumerate(ins) if i.label}
                    continue
            k += 1
        if not changed: break
    if verbose: print(f"; hazard pass inserted {inserted} s_nop")
    return [i.text for i in ins], inserted

class Asm:
    def __init__(self): self.L = []
    def __call__(self, s):
        for ln in s.split("\n"):
            if ln.strip(): self.L.append(ln.strip())
    def text(self, header, footer, verbose=False):
        body, n = fix_hazards(self.L, verbose)
        self.npads = n
        return "\n".join(header + body + footer) + "\n"

def header(grid, block, lds, comments=()):
    return list(comments) + [f"; @launch grid=({grid},1,1) block=({block},1,1) lds={lds}",
        '.amdgcn_target "amdgcn-amd-amdhsa--gfx950"', ".text", f".globl {KNAME}", ".p2align 8", f".type {KNAME},@function", f"{KNAME}:"]
def footer(nv, ns, acc):
    return ['.section .rodata,"a"', ".p2align 6", f".amdhsa_kernel {KNAME}",
        f"  .amdhsa_next_free_vgpr {nv}", f"  .amdhsa_next_free_sgpr {ns}", f"  .amdhsa_accum_offset {acc}",
        "  .amdhsa_group_segment_fixed_size 0", "  .amdhsa_kernarg_size 96", "  .amdhsa_user_sgpr_count 2",
        "  .amdhsa_user_sgpr_kernarg_segment_ptr 1", "  .amdhsa_system_sgpr_workgroup_id_x 1",
        "  .amdhsa_float_denorm_mode_32 3", ".end_amdhsa_kernel"]
```

```python
import sys
from asmlib import *

QP = 0x0
AP = 0x20000
L2 = 0x68000
FP = 0x71000
GOFF = 0x99800
WS_SIZE = 0x9A000
STAMP = 0x100000
DBGO = 0x120000
XS = 0x0; QL = 0x900; FLG = 0xB00; MLL = 0xB40; ACC = 0xC00; SCR = 0x2000; HS = 0x4000; SCR2 = 0x4400; LDS_SIZE = 0x6800
SPIN_LIMIT = 0x40000
VL4, VL16, VFOLD, VC16, VR8, VZ = 120, 121, 122, 123, 124, 125

def gen(T=4, stamps=False, pace=4, kvpol="nt", wpol="nt", W=12, dbg=False):
    a = Asm()
    def stamp(k):
        if stamps:
            a(f"s_memrealtime s[84:85]\ns_waitcnt lgkmcnt(0)\ns_mov_b32 s{92+k}, s84")
    def srd(base, plo, size):
        a(f"s_mov_b32 s{base}, s{plo}\ns_mov_b32 s{base+1}, s{plo+1}\ns_mov_b32 s{base+2}, {size:#x}\ns_mov_b32 s{base+3}, 0x20000")
    uid = [0]
    def lab(n):
        uid[0] += 1; return f"L_{n}_{uid[0]}"
    def spin_lds(flagoff, want, vtmp, vzero):
        L = lab("sp"); D = lab("spd")
        a("s_mov_b32 s82, 0")
        a(f"{L}:")
        a(f"ds_read_b32 v{vtmp}, v{vzero} offset:{FLG+flagoff}")
        a("s_waitcnt lgkmcnt(0)")
        a(f"v_readfirstlane_b32 s6, v{vtmp}")
        a(f"s_cmp_eq_u32 s6, {want}\ns_cbranch_scc1 {D}")
        a(f"s_sleep 1\ns_add_u32 s82, s82, 1\ns_cmp_lt_u32 s82, {SPIN_LIMIT:#x}\ns_cbranch_scc1 {L}\ns_branch L_exit")
        a(f"{D}:")
    def allrow_op(op, v, t):
        a(f"v_mov_b32 v{t}, v{v}\nv_permlane16_swap_b32 v{v}, v{t}\n{op} v{v}, v{v}, v{t}")
        a(f"v_mov_b32 v{t}, v{v}\nv_permlane32_swap_b32 v{v}, v{t}\n{op} v{v}, v{v}, v{t}")
    def wave_sum(v, t):
        for r in (8, 4, 2, 1):
            a(f"v_add_f32_dpp v{v}, v{v}, v{v} row_ror:{r} row_mask:0xf bank_mask:0xf")
        allrow_op("v_add_f32", v, t)
    def rbf(dst, src):
        a(f"v_cvt_pk_bf16_f32 v{dst}, v{src}, v{src}\nv_and_b32 v{dst}, s90, v{dst}")
    def treduce(x):
        a(f"v_permlane16_swap_b32 v{x}, v{x+1}\nv_permlane16_swap_b32 v{x+2}, v{x+3}")
        a(f"v_add_f32 v{x}, v{x}, v{x+1}\nv_add_f32 v{x+2}, v{x+2}, v{x+3}")
        a(f"v_permlane32_swap_b32 v{x}, v{x+2}\nv_add_f32 v{x}, v{x}, v{x+2}")
    def buildB(dst, src):
        for q in range(4): a(f"v_and_b32 v{dst+q}, v{src}, v{2+q}")
    def valid_check(regs, t, retry_label):
        r = list(regs)
        a(f"v_max3_u32 v{t}, v{r[0]}, v{r[1]}, v{r[2]}")
        r = r[3:]
        while len(r) >= 2:
            a(f"v_max3_u32 v{t}, v{t}, v{r[0]}, v{r[1]}"); r = r[2:]
        if r: a(f"v_max_u32 v{t}, v{t}, v{r[0]}")
        a(f"v_cmp_eq_u32 vcc, -1, v{t}\ns_cmp_lg_u64 vcc, 0\ns_cbranch_scc1 {retry_label}")
    def tag_check(regs, t0, t1, retry_label):
        r = list(regs)
        a(f"v_min3_u32 v{t0}, v{r[0]}, v{r[1]}, v{r[2]}\nv_max3_u32 v{t1}, v{r[0]}, v{r[1]}, v{r[2]}")
        r = r[3:]
        while len(r) >= 2:
            a(f"v_min3_u32 v{t0}, v{t0}, v{r[0]}, v{r[1]}\nv_max3_u32 v{t1}, v{t1}, v{r[0]}, v{r[1]}"); r = r[2:]
        if r: a(f"v_min_u32 v{t0}, v{t0}, v{r[0]}\nv_max_u32 v{t1}, v{t1}, v{r[0]}")
        a(f"v_cmp_ne_u32 vcc, s91, v{t0}\ns_cmp_lg_u64 vcc, 0\ns_cbranch_scc1 {retry_label}")
        a(f"v_cmp_ne_u32 vcc, s91, v{t1}\ns_cmp_lg_u64 vcc, 0\ns_cbranch_scc1 {retry_label}")
    def spin_guard(loop_label, sleep):
        a(f"s_sleep {sleep}\ns_add_u32 s82, s82, 1\ns_cmp_lt_u32 s82, {SPIN_LIMIT:#x}\ns_cbranch_scc1 {loop_label}\ns_branch L_exit")
    def mfma(acc, A, B):
        a(f"v_mfma_f32_16x16x32_bf16 v[{acc}:{acc+3}], {A}, v[{B}:{B+3}], v[{acc}:{acc+3}]")
    def zero(regs):
        for r in regs: a(f"v_mov_b32 v{r}, 0")

    a("s_cmp_ge_u32 s2, 256\ns_cbranch_scc1 L_end")
    a("s_load_dwordx16 s[8:23], s[0:1], 0\ns_load_dwordx8 s[24:31], s[0:1], 64")
    if stamps: a("s_memrealtime s[84:85]")
    a("v_lshrrev_b32 v1, 6, v0\nv_and_b32 v0, 63, v0")
    a("s_and_b32 s4, s2, 15\ns_lshr_b32 s5, s2, 4")
    a("v_readfirstlane_b32 s3, v1")
    a("s_mov_b32 s88, 0x3fb8aa3b\ns_mov_b32 s89, 0x3db504f3\ns_mov_b32 s90, 0xffff0000")
    a("v_and_b32 v6, 1, v0\nv_lshlrev_b32 v6, 4, v6\nv_mov_b32 v7, 0xffff\nv_lshlrev_b32 v7, v6, v7\nv_bfe_u32 v8, v0, 1, 2")
    for q in range(4):
        a(f"v_cmp_eq_u32 vcc, {q}, v8\nv_cndmask_b32 v{2+q}, 0, v7, vcc")
    a("s_lshl_b32 s56, s4, 4\ns_add_u32 s56, s56, s5")
    a("s_waitcnt lgkmcnt(0)")
    if stamps:
        a("s_mov_b32 s92, s84")
        for k in range(1, 8): a(f"s_mov_b32 s{92+k}, 0")
    srd(40, 30, DBGO + 0x20000 if (stamps or dbg) else WS_SIZE)
    a("s_cmp_ge_u32 s3, 4\ns_cbranch_scc1 L_stream")

    a(f"v_mov_b32 v{VZ}, 0\nv_lshlrev_b32 v{VL4}, 2, v0\nv_lshlrev_b32 v{VL16}, 4, v0")
    a(f"v_lshrrev_b32 v{VR8}, 3, v0\nv_and_b32 v{VC16}, 7, v0\nv_lshlrev_b32 v{VC16}, 4, v{VC16}")
    a(f"v_lshrrev_b32 v6, 5, v0\nv_lshlrev_b32 v6, 8, v6\nv_and_b32 v7, 3, v{VR8}\nv_lshlrev_b32 v7, 2, v7\nv_add3_u32 v{VFOLD}, v6, v7, v{VC16}")
    a("s_sub_u32 s57, s5, 10\ns_lshl_b32 s57, s57, 4\ns_add_u32 s57, s57, s4")
    a("s_cmp_eq_u32 s3, 0\ns_cbranch_scc1 L_h0")
    a("s_cmp_eq_u32 s3, 1\ns_cbranch_scc1 L_h1")
    a("s_barrier")
    a("s_branch L_hwait")

    a("L_h1:")
    a("v_mov_b32 v10, -1\nv_mov_b32 v11, -1\nv_mov_b32 v12, -1\nv_mov_b32 v13, -1")
    a(f"s_mul_i32 s6, s56, 1152\ns_add_u32 s6, s6, {AP:#x}")
    a(f"buffer_store_dwordx4 v[10:13], v{VL16}, s[40:43], s6 offen sc1")
    a(f"s_mov_b64 exec, 0xf\nbuffer_store_dword v10, v{VL4}, s[40:43], s6 offen offset:1024 sc1\ns_mov_b64 exec, -1")
    a("s_cmp_lt_u32 s5, 9\ns_cbranch_scc0 L_h1_nowo")
    a(f"s_lshl_b32 s6, s5, 4\ns_add_u32 s6, s6, s4\ns_lshl_b32 s6, s6, 8\ns_add_u32 s6, s6, {L2:#x}")
    a(f"buffer_store_dword v10, v{VL4}, s[40:43], s6 offen sc1")
    a("L_h1_nowo:")
    a("s_cmp_lt_u32 s57, 72\ns_cbranch_scc0 L_h1_noffn")
    a(f"s_mul_i32 s6, s57, 2304\ns_add_u32 s6, s6, {FP:#x}")
    a(f"buffer_store_dwordx4 v[10:13], v{VL16}, s[40:43], s6 offen sc1")
    a(f"buffer_store_dwordx4 v[10:13], v{VL16}, s[40:43], s6 offen offset:1024 sc1")
    a(f"buffer_store_dword v10, v{VL4}, s[40:43], s6 offen offset:2048 sc1")
    a("L_h1_noffn:")
    a("s_barrier")
    a("s_waitcnt vmcnt(0)")
    a("v_mov_b32 v10, 1")
    a(f"ds_write_b32 v{VZ}, v10 offset:{FLG+4}")
    stamp(1)
    a("s_branch L_hwait")

    a("L_h0:")
    srd(32, 8, 1152)
    srd(36, 14, 576 * 8192)
    a("v_lshlrev_b32 v8, 1, v0")
    for i in range(9):
        a(f"buffer_load_ushort v{10+i}, v8, s[32:35], 0 offen offset:{128*i}")
    a(f"v_lshlrev_b32 v6, 13, v{VR8}\nv_add_u32 v6, v6, v{VC16}")
    a("s_lshr_b32 s58, s5, 2\ns_mul_i32 s59, s58, 144")
    a("s_lshl_b32 s6, s59, 13\ns_lshl_b32 s7, s4, 9\ns_add_u32 s6, s6, s7\ns_and_b32 s7, s5, 3\ns_lshl_b32 s7, s7, 7\ns_add_u32 s6, s6, s7")
    for t in range(18):
        a(f"buffer_load_dwordx4 a[{4*t}:{4*t+3}], v6, s[36:39], s6 offen {wpol}")
        if t < 17: a("s_add_u32 s6, s6, 0x10000")
    a(f"ds_write_b32 v{VZ}, v{VZ} offset:{FLG}\nds_write_b32 v{VZ}, v{VZ} offset:{FLG+4}\nds_write_b32 v{VZ}, v{VZ} offset:{FLG+8}")
    a("s_waitcnt lgkmcnt(0)\ns_barrier")
    a(f"s_load_dword s91, s[30:31], {GOFF:#x}")
    a("s_waitcnt vmcnt(18)")
    stamp(1)
    for i in range(9): a(f"v_lshlrev_b32 v{10+i}, 16, v{10+i}")
    a("v_add_f32 v19, v10, v11")
    for i in range(2, 9): a(f"v_add_f32 v19, v19, v{10+i}")
    wave_sum(19, 20)
    a("v_mul_f32 v19, 0x3ae38e39, v19")
    rbf(21, 19)
    a("v_sub_f32 v22, v10, v19\nv_mul_f32 v23, v22, v22")
    for i in range(1, 9):
        a(f"v_sub_f32 v22, v{10+i}, v19\nv_fmac_f32 v23, v22, v22")
    wave_sum(23, 20)
    a("v_mul_f32 v23, 0x3ae38e39, v23")
    rbf(23, 23)
    a("v_add_f32 v23, 0x3727c5ac, v23")
    rbf(23, 23)
    a("v_sqrt_f32 v23, v23")
    rbf(23, 23)
    a("v_rcp_f32 v24, v23")
    for i in range(9):
        a(f"v_sub_f32 v22, v{10+i}, v21")
        rbf(22, 22)
        a("v_mul_f32 v25, v22, v24\nv_fma_f32 v26, -v25, v23, v22\nv_fma_f32 v25, v26, v24, v25")
        a(f"v_cvt_pk_bf16_f32 v{48+i}, v25, v25")
        a(f"ds_write_b32 v{VL4}, v{48+i} offset:{XS + 256*i}")
    a(f"s_lshl_b32 s6, s59, 2\nv_lshlrev_b32 v7, 2, v{VR8}\nv_add_u32 v7, s6, v7")
    for t in range(18):
        a(f"ds_read_b32 v{64+t}, v7 offset:{XS + 32*t}")
    stamp(2)
    zero(range(20, 24))
    a("s_waitcnt lgkmcnt(0)")
    a("s_add_u32 s91, s91, 1")
    for t in range(18):
        b = 24 + 4 * (t & 1)
        buildB(b, 64 + t)
        a(f"s_waitcnt vmcnt({17 - t})")
        mfma(20, f"a[{4*t}:{4*t+3}]", b)
    a(f"ds_write_b128 v{VL16}, v[20:23] offset:{SCR}")
    a(f"ds_read_b32 v24, v{VFOLD} offset:{SCR}\nds_read_b32 v25, v{VFOLD} offset:{SCR+640}")
    a("s_waitcnt lgkmcnt(0)")
    a("v_add_f32 v24, v24, v25\nv_mov_b32 v25, s91")
    spin_lds(4, 1, 26, VZ)
    a(f"s_lshl_b32 s6, s56, 9\ns_add_u32 s6, s6, {QP:#x}\nv_lshlrev_b32 v8, 3, v0")
    a(f"buffer_store_dwordx2 v[24:25], v8, s[40:43], s6 offen sc1")
    stamp(3)
    a(f"s_lshl_b32 s6, s4, 13\ns_add_u32 s6, s6, {QP:#x}\ns_add_u32 s7, s6, 4096\nv_lshlrev_b32 v8, 5, v0")
    a("s_mov_b32 s82, 0")
    a("L_h0_gq:")
    for k in range(4):
        for hf in range(2):
            r = 64 + 8 * k + 4 * hf
            a(f"buffer_load_dwordx4 v[{r}:{r+3}], v8, s[40:43], s{6 + (k >> 1)} offen offset:{2048*(k & 1) + 16*hf} sc1")
    a("s_waitcnt vmcnt(0)")
    tag_check([65 + 2 * i for i in range(16)], 26, 27, "L_h0_gq_retry")
    stamp(4)
    for r in range(4):
        a(f"v_add_f32 v{64+2*r}, v{64+2*r}, v{72+2*r}\nv_add_f32 v{64+2*r}, v{64+2*r}, v{80+2*r}\nv_add_f32 v{64+2*r}, v{64+2*r}, v{88+2*r}")
    a("v_cvt_pk_bf16_f32 v64, v64, v66\nv_cvt_pk_bf16_f32 v65, v68, v70")
    a("v_lshlrev_b32 v8, 3, v0")
    a(f"ds_write_b64 v8, v[64:65] offset:{QL}")
    a("v_mov_b32 v10, 1\ns_waitcnt lgkmcnt(0)")
    a(f"ds_write_b32 v{VZ}, v10 offset:{FLG}")
    if dbg:
        a(f"s_lshl_b32 s6, s2, 9\ns_add_u32 s6, s6, {DBGO:#x}")
        a("buffer_store_dwordx2 v[64:65], v8, s[40:43], s6 offen")
    stamp(5)
    a("s_branch L_hjob")
    a("L_h0_gq_retry:")
    spin_guard("L_h0_gq", 1)

    a("L_hwait:")
    spin_lds(0, 1, 26, VZ)
    a("L_hjob:")
    a("s_cmp_lt_u32 s5, 9\ns_cbranch_scc1 L_job_wo")
    a("s_cmp_eq_u32 s5, 9\ns_cbranch_scc1 L_job_fin")
    a("s_cmp_eq_u32 s3, 0\ns_cbranch_scc1 L_b1_exit")
    a("s_cmp_lt_u32 s57, 72\ns_cbranch_scc1 L_job_ffn")
    a("L_b1_exit:")
    a("s_barrier\ns_branch L_exit")

    a("L_job_wo:")
    srd(36, 16, 4096 * 1152)
    a(f"v_mul_u32_u24 v6, 1152, v{VR8}\nv_add_u32 v6, v6, v{VC16}")
    a("s_lshl_b32 s6, s4, 8\ns_lshl_b32 s7, s3, 5\ns_add_u32 s6, s6, s7\ns_mul_i32 s6, s6, 1152\ns_lshl_b32 s7, s5, 7\ns_add_u32 s6, s6, s7")
    for t in range(8):
        off = (128 * (t >> 2) + 8 * (t & 3)) * 1152
        a(f"s_add_u32 s7, s6, {off}")
        a(f"buffer_load_dwordx4 a[{4*t}:{4*t+3}], v6, s[36:39], s7 offen {wpol}")
    a("v_lshrrev_b32 v10, 4, v0\nv_mul_u32_u24 v10, 1152, v10\nv_and_b32 v11, 15, v0\nv_lshlrev_b32 v12, 4, v11\nv_add_u32 v12, v10, v12")
    a("v_bfe_u32 v11, v0, 3, 1\nv_lshlrev_b32 v11, 3, v11\nv_add_u32 v13, v10, v11\nv_add_u32 v13, 1024, v13")
    a(f"s_mul_i32 s60, s4, {16*1152}\ns_add_u32 s60, s60, {AP:#x}")
    for i in range(4): a(f"s_add_u32 s{64+i}, s60, {4608*i}")
    a("s_lshl_b32 s7, s3, 8")
    for i in range(4): a(f"s_add_u32 s{68+i}, s{64+i}, s7")
    a(f"v_lshlrev_b32 v14, 2, v{VR8}")
    a("s_waitcnt vmcnt(0)")
    stamp(6)
    a("s_barrier")
    a("s_mov_b32 s82, 0")
    a("L_wo_g:")
    for i in range(4):
        a(f"buffer_load_dwordx4 v[{64+4*i}:{67+4*i}], v12, s[40:43], s{68+i} offen sc1")
        a(f"buffer_load_dwordx2 v[{80+2*i}:{81+2*i}], v13, s[40:43], s{64+i} offen sc1")
    a("s_waitcnt vmcnt(0)")
    valid_check(range(64, 88), 26, "L_wo_retry")
    a("v_max3_f32 v20, v80, v82, v84\nv_max_f32 v20, v20, v86")
    allrow_op("v_max_f32", 20, 21)
    for i in range(4): a(f"v_sub_f32 v{24+i}, v{80+2*i}, v20")
    for i in range(4): a(f"v_exp_f32 v{24+i}, v{24+i}")
    a("v_mul_f32 v22, v24, v81\nv_fmac_f32 v22, v25, v83\nv_fmac_f32 v22, v26, v85\nv_fmac_f32 v22, v27, v87")
    allrow_op("v_add_f32", 22, 21)
    for r in range(4):
        a(f"v_mul_f32 v{28+r}, v24, v{64+r}")
        for i in range(1, 4):
            a(f"v_fmac_f32 v{28+r}, v{24+i}, v{64+4*i+r}")
    treduce(28)
    a("v_rcp_f32 v22, v22")
    a("v_mul_f32 v28, v28, v22\nv_cvt_pk_bf16_f32 v28, v28, v28")
    for t in range(8):
        off = (16 * (t & 3) + 8 * (t >> 2)) * 4
        a(f"ds_bpermute_b32 v{32+t}, v14, v28 offset:{off}")
    zero(range(20, 24))
    a("s_waitcnt lgkmcnt(0)")
    for t in range(8):
        b = 44 + 4 * (t & 1)
        buildB(b, 32 + t)
        mfma(20, f"a[{4*t}:{4*t+3}]", b)
    a(f"s_lshl_b32 s6, s3, 11\nv_add_u32 v8, s6, v{VL16}")
    a(f"ds_write_b128 v8, v[20:23] offset:{SCR}")
    a("s_waitcnt lgkmcnt(0)\ns_barrier")
    a("s_cmp_eq_u32 s3, 0\ns_cbranch_scc0 L_exit")
    for w in range(4):
        a(f"ds_read_b32 v{24+2*w}, v{VFOLD} offset:{SCR + 2048*w}\nds_read_b32 v{25+2*w}, v{VFOLD} offset:{SCR + 2048*w + 640}")
    a("s_waitcnt lgkmcnt(0)")
    a("v_add_f32 v24, v24, v25\nv_add_f32 v26, v26, v27\nv_add_f32 v28, v28, v29\nv_add_f32 v30, v30, v31")
    a("v_add_f32 v24, v24, v26\nv_add_f32 v28, v28, v30\nv_add_f32 v24, v24, v28")
    a(f"s_lshl_b32 s6, s5, 4\ns_add_u32 s6, s6, s4\ns_lshl_b32 s6, s6, 8\ns_add_u32 s6, s6, {L2:#x}")
    a(f"buffer_store_dword v24, v{VL4}, s[40:43], s6 offen sc1")
    stamp(7)
    a("s_branch L_exit")
    a("L_wo_retry:")
    spin_guard("L_wo_g", 1)

    a("L_job_fin:")
    a("s_cmp_lt_u32 s4, 9\ns_cbranch_scc0 L_b1_exit")
    a("s_cmp_eq_u32 s3, 0\ns_cbranch_scc0 L_b1_exit")
    srd(32, 8, 1152)
    srd(48, 26, 1152)
    a("v_and_b32 v10, 15, v0\nv_lshlrev_b32 v11, 3, v10\nv_lshrrev_b32 v12, 4, v0\nv_lshlrev_b32 v13, 1, v12\nv_add_u32 v11, v11, v13")
    a("s_lshl_b32 s61, s4, 7")
    a("buffer_load_ushort v15, v11, s[32:35], s61 offen")
    a("v_lshlrev_b32 v16, 9, v0\nv_add_u32 v16, 4, v16")
    a("s_mov_b32 s82, 0")
    a("L_fin_flags:")
    for i in range(4):
        a(f"s_mov_b32 s6, {QP + 32768*i:#x}\nbuffer_load_dword v{20+i}, v16, s[40:43], s6 offen sc1")
    a("s_waitcnt vmcnt(0)")
    tag_check([20, 21, 22, 23], 26, 27, "L_fin_flags_retry")
    a("s_cmp_eq_u32 s4, 0\ns_cbranch_scc0 L_fin_flags_ok")
    a(f"v_mov_b32 v20, s91\ns_mov_b32 s6, {GOFF:#x}\ns_mov_b64 exec, 1")
    a(f"buffer_store_dword v20, v{VZ}, s[40:43], s6 offen sc1\ns_mov_b64 exec, -1")
    a("L_fin_flags_ok:")
    a("v_mul_u32_u24 v12, 2304, v12\nv_lshlrev_b32 v13, 4, v10\nv_add_u32 v12, v12, v13")
    a(f"s_lshl_b32 s62, s4, 8\ns_add_u32 s62, s62, {FP:#x}")
    a("s_mov_b32 s82, 0")
    a("L_fin_f:")
    a("s_mov_b32 s6, s62")
    for i in range(18):
        a(f"buffer_load_dwordx4 v[{48+4*i}:{51+4*i}], v12, s[40:43], s6 offen sc1")
        if i < 17: a("s_add_u32 s6, s6, 9216")
    a("s_waitcnt vmcnt(0)")
    valid_check(range(48, 120), 26, "L_fin_f_retry")
    for i in range(1, 18):
        for r in range(4):
            a(f"v_add_f32 v{48+r}, v{48+r}, v{48+4*i+r}")
    treduce(48)
    rbf(17, 48)
    a("v_lshlrev_b32 v15, 16, v15")
    stamp(6)
    a("s_barrier")
    a(f"s_lshl_b32 s62, s4, 12\ns_add_u32 s62, s62, {L2:#x}")
    a("s_mov_b32 s82, 0")
    a("L_fin_g:")
    for i in range(4):
        a(f"buffer_load_dwordx4 v[{48+4*i}:{51+4*i}], v{VL16}, s[40:43], s62 offen offset:{1024*i} sc1")
    a("s_waitcnt vmcnt(0)")
    valid_check(range(48, 64), 26, "L_fin_g_retry")
    for r in range(4):
        a(f"v_add_f32 v{48+r}, v{48+r}, v{52+r}\nv_add_f32 v{56+r}, v{56+r}, v{60+r}\nv_add_f32 v{48+r}, v{48+r}, v{56+r}")
    treduce(48)
    rbf(48, 48)
    a("v_add_f32 v48, v15, v48")
    rbf(48, 48)
    a("v_add_f32 v48, v48, v17\nv_cvt_pk_bf16_f32 v48, v48, v48")
    a("buffer_store_short v48, v11, s[48:51], s61 offen")
    stamp(7)
    a("s_branch L_exit")
    a("L_fin_flags_retry:")
    spin_guard("L_fin_flags", 32)
    a("L_fin_f_retry:")
    spin_guard("L_fin_f", 64)
    a("L_fin_g_retry:")
    spin_guard("L_fin_g", 1)

    a("L_job_ffn:")
    srd(32, 20, 576 * 9216)
    srd(36, 22, 576 * 9216)
    srd(48, 24, 4608 * 1152)
    a("s_sub_u32 s58, s3, 1")
    a(f"v_mul_u32_u24 v6, 9216, v{VR8}\nv_add_u32 v6, v6, v{VC16}")
    a(f"v_mul_u32_u24 v7, 1152, v{VR8}\nv_add_u32 v7, v7, v{VC16}")
    a(f"s_mul_i32 s60, s58, 192\ns_lshl_b32 s6, s60, 2\nv_lshlrev_b32 v10, 2, v{VR8}\nv_add_u32 v10, s6, v10")
    a("s_mul_i32 s62, s60, 9216\ns_lshl_b32 s6, s57, 7\ns_add_u32 s62, s62, s6")
    a("s_mul_i32 s63, s57, 73728\ns_mul_i32 s6, s58, 384\ns_add_u32 s63, s63, s6")
    loads = []
    for t in range(24): loads += [("g", t), ("u", t)]
    for t in range(8): loads += [("d", t, 0), ("d", t, 1), ("d", t, 2)]
    R = W
    def issue(i):
        ld = loads[i]; r = 4 * (i % R)
        if ld[0] == "g":
            a(f"buffer_load_dwordx4 a[{r}:{r+3}], v6, s[32:35], s62 offen {wpol}")
        elif ld[0] == "u":
            a(f"buffer_load_dwordx4 a[{r}:{r+3}], v6, s[36:39], s62 offen {wpol}\ns_add_u32 s62, s62, {8*9216}")
        else:
            a(f"buffer_load_dwordx4 a[{r}:{r+3}], v7, s[48:51], s63 offen offset:{128*ld[2]} {wpol}")
            if ld[2] == 2: a(f"s_add_u32 s63, s63, {8*1152}")
    for i in range(W): issue(i)
    zero(range(20, 40))
    for i, ld in enumerate(loads):
        if ld[0] == "g":
            t = ld[1]
            if t % 4 == 0:
                for u in range(4): a(f"ds_read_b32 v{48+u}, v10 offset:{XS + 32*(t+u)}")
                a("s_waitcnt lgkmcnt(0)")
            buildB(44, 48 + (t % 4))
        if ld[0] == "d" and ld[1] == 0 and ld[2] == 0:
            a(f"s_lshl_b32 s6, s58, 11\nv_add_u32 v8, s6, v{VL16}")
            a(f"ds_write_b128 v8, v[20:23] offset:{SCR}\nds_write_b128 v8, v[24:27] offset:{SCR+1024}")
            a("v_mov_b32 v11, 1\ns_waitcnt lgkmcnt(0)")
            a(f"s_mov_b64 exec, 1\nds_add_u32 v{VZ}, v11 offset:{FLG+8}\ns_mov_b64 exec, -1")
            spin_lds(8, 3, 26, VZ)
            for w in range(3):
                for m in range(2):
                    a(f"ds_read_b32 v{48+4*w+2*m}, v{VFOLD} offset:{SCR+2048*w+1024*m}\nds_read_b32 v{49+4*w+2*m}, v{VFOLD} offset:{SCR+2048*w+1024*m+640}")
            a("s_waitcnt lgkmcnt(0)")
            a("v_add_f32 v48, v48, v49\nv_add_f32 v52, v52, v53\nv_add_f32 v56, v56, v57\nv_add_f32 v48, v48, v52\nv_add_f32 v48, v48, v56")
            a("v_add_f32 v50, v50, v51\nv_add_f32 v54, v54, v55\nv_add_f32 v58, v58, v59\nv_add_f32 v50, v50, v54\nv_add_f32 v50, v50, v58")
            rbf(48, 48); rbf(50, 50)
            a("v_mul_f32 v52, v48, v48\nv_mul_f32 v52, v52, v48\nv_mul_f32 v52, 0x3d372713, v52\nv_add_f32 v52, v48, v52")
            a("v_mul_f32 v52, 0x3f4c422a, v52\nv_mul_f32 v52, 0xc038aa3b, v52\nv_exp_f32 v52, v52")
            a("v_add_f32 v52, 1.0, v52\nv_rcp_f32 v52, v52")
            a("v_mul_f32 v52, v48, v52")
            rbf(52, 52)
            a("v_mul_f32 v52, v52, v50\nv_cvt_pk_bf16_f32 v52, v52, v52")
            a(f"s_lshl_b32 s6, s58, 8\nv_add_u32 v8, s6, v{VL4}")
            a(f"ds_write_b32 v8, v52 offset:{HS}")
            a(f"v_lshlrev_b32 v8, 2, v{VR8}\nv_add_u32 v8, s6, v8")
            for t in range(8): a(f"ds_read_b32 v{64+t}, v8 offset:{HS + 32*t}")
            a("s_waitcnt lgkmcnt(0)")
        if ld[0] == "d" and ld[2] == 0:
            buildB(44, 64 + ld[1])
        a(f"s_waitcnt vmcnt({min(W, len(loads) - i) - 1})")
        r = 4 * (i % R)
        acc = 20 if ld[0] == "g" else 24 if ld[0] == "u" else 28 + 4 * ld[2]
        mfma(acc, f"a[{r}:{r+3}]", 44)
        if i + W < len(loads): issue(i + W)
    a(f"s_mul_i32 s6, s58, 3072\nv_add_u32 v8, s6, v{VL16}\nv_add_u32 v9, s6, v{VFOLD}")
    for u in range(3):
        a(f"ds_write_b128 v8, v[{28+4*u}:{31+4*u}] offset:{SCR2 + 1024*u}")
    for u in range(3):
        a(f"ds_read_b32 v{48+2*u}, v9 offset:{SCR2 + 1024*u}\nds_read_b32 v{49+2*u}, v9 offset:{SCR2 + 1024*u + 640}")
    a("s_waitcnt lgkmcnt(0)")
    a(f"s_mul_i32 s6, s57, 2304\ns_mul_i32 s7, s58, 768\ns_add_u32 s6, s6, s7\ns_add_u32 s6, s6, {FP:#x}")
    for u in range(3):
        a(f"v_add_f32 v{48+2*u}, v{48+2*u}, v{49+2*u}")
        a(f"buffer_store_dword v{48+2*u}, v{VL4}, s[40:43], s6 offen offset:{256*u} sc1")
    stamp(6)
    a("s_barrier\ns_branch L_exit")

    a("L_stream:")
    a("s_lshl_b32 s6, s4, 24")
    a("s_add_u32 s32, s10, s6\ns_addc_u32 s33, s11, 0\ns_mov_b32 s34, 0x1000000\ns_mov_b32 s35, 0x20000")
    a("s_add_u32 s36, s12, s6\ns_addc_u32 s37, s13, 0\ns_mov_b32 s38, 0x1000000\ns_mov_b32 s39, 0x20000")
    a("s_sub_u32 s58, s3, 4")
    a("s_lshl_b32 s60, s5, 2\ns_add_u32 s60, s60, s58\ns_lshl_b32 s60, s60, 12")
    a("v_lshlrev_b32 v1, 4, v0")
    STR = 262144
    def kload(s):
        for j in range(4):
            r = 64 + 16 * s + 4 * j
            a(f"buffer_load_dwordx4 v[{r}:{r+3}], v1, s[32:35], s60 offen offset:{1024*j} {kvpol}")
    def vload(s):
        for j in range(4):
            r = 16 * s + 4 * j
            a(f"buffer_load_dwordx4 a[{r}:{r+3}], v1, s[36:39], s60 offen offset:{1024*j} {kvpol}")
        a(f"s_add_u32 s60, s60, {STR}")
    a("s_barrier")
    kload(0); vload(0)
    for s in range(1, T):
        if pace: a(f"s_waitcnt vmcnt({pace})")
        kload(s)
        if pace: a(f"s_waitcnt vmcnt({pace})")
        vload(s)
    stamp(1)
    a("v_mov_b32 v19, 0")
    spin_lds(0, 1, 62, 19)
    stamp(2)
    a("v_and_b32 v62, 15, v0\nv_lshlrev_b32 v62, 4, v62")
    a(f"ds_read_b128 v[6:9], v62 offset:{QL}\nds_read_b128 v[10:13], v62 offset:{QL+256}")
    a("v_mov_b32 v14, 0xf149f2ca\nv_mov_b32 v16, 0xf149f2ca\nv_mov_b32 v17, 0")
    zero(range(20, 24))
    a(f"s_mov_b32 s61, {64 // T}")
    a("s_waitcnt lgkmcnt(0)")
    a("L_loop:")
    S0, S1, Q0, Q1 = 24, 28, 6, 10
    for s in range(T):
        kb = 64 + 16 * s; vb = 16 * s
        a(f"s_waitcnt vmcnt({8*T-4})")
        for e in range(4):
            for j in range(4):
                for (S, Q) in ((S0, Q0), (S1, Q1)):
                    if e == 0: a(f"v_dot2_f32_bf16 v{S+j}, v{kb+4*j}, v{Q}, 0")
                    else: a(f"v_dot2c_f32_bf16 v{S+j}, v{kb+4*j+e}, v{Q+e}")
        kload(s)
        for j in range(4): a(f"v_add_f32_dpp v{S0+j}, v{S0+j}, v{S0+j} row_ror:8 row_mask:0xf bank_mask:0x3")
        for j in range(4): a(f"v_add_f32_dpp v{S0+j}, v{S1+j}, v{S1+j} row_ror:8 row_mask:0xf bank_mask:0xc")
        for m in ("row_half_mirror", "quad_perm:[1,0,3,2]", "quad_perm:[2,3,0,1]"):
            for j in range(4): a(f"v_add_f32_dpp v{S0+j}, v{S0+j}, v{S0+j} {m} row_mask:0xf bank_mask:0xf")
        a("v_cvt_pk_bf16_f32 v52, v24, v25\nv_cvt_pk_bf16_f32 v53, v26, v27")
        a("v_lshlrev_b32 v48, 16, v52\nv_and_b32 v49, s90, v52\nv_lshlrev_b32 v50, 16, v53\nv_and_b32 v51, s90, v53")
        for j in range(4): a(f"v_mul_f32 v{48+j}, s89, v{48+j}")
        a("v_cvt_pk_bf16_f32 v52, v48, v49\nv_cvt_pk_bf16_f32 v53, v50, v51")
        a("v_lshlrev_b32 v54, 16, v52\nv_and_b32 v55, s90, v52\nv_lshlrev_b32 v56, 16, v53\nv_and_b32 v57, s90, v53")
        a("v_max3_f32 v19, v54, v55, v56\nv_max3_f32 v19, v19, v57, v14")
        a("v_mov_b32 v62, v19\nv_permlane16_swap_b32 v19, v62\nv_max_f32 v19, v19, v62")
        a("v_mov_b32 v62, v19\nv_permlane32_swap_b32 v19, v62\nv_max_f32 v14, v19, v62")
        a("v_mul_f32 v15, s88, v14\nv_sub_f32 v18, v16, v15")
        for j in range(4): a(f"v_fma_f32 v{54+j}, v{54+j}, s88, -v15")
        a("v_exp_f32 v18, v18")
        for j in range(4): a(f"v_exp_f32 v{54+j}, v{54+j}")
        a("v_mov_b32 v16, v15")
        for j in range(4): a(f"v_cvt_pk_bf16_f32 v{58+j}, v{54+j}, v{54+j}")
        a("v_add_f32 v19, v54, v55\nv_add_f32 v62, v56, v57")
        for r in range(4): a(f"v_mul_f32 v{20+r}, v{20+r}, v18")
        a("v_add_f32 v19, v19, v62")
        for j in range(4): buildB(32 + 4 * j, 58 + j)
        a("v_fma_f32 v17, v17, v18, v19")
        a(f"s_waitcnt vmcnt({8*T-4})")
        for j in range(4): mfma(20, f"a[{vb+4*j}:{vb+4*j+3}]", 32 + 4 * j)
        vload(s)
    a("s_sub_u32 s61, s61, 1\ns_cmp_lg_u32 s61, 0\ns_cbranch_scc1 L_loop")
    stamp(3)
    allrow_op("v_add_f32", 17, 62)
    a(f"s_lshl_b32 s6, s58, 10\nv_add_u32 v62, s6, v1")
    a(f"ds_write_b128 v62, v[20:23] offset:{ACC}")
    a("v_bfe_u32 v63, v0, 3, 1\nv_lshlrev_b32 v63, 3, v63\ns_lshl_b32 s6, s58, 4\nv_add_u32 v62, s6, v63")
    a(f"s_mov_b64 exec, 0x101\nds_write_b64 v62, v[16:17] offset:{MLL}\ns_mov_b64 exec, -1")
    a("s_waitcnt lgkmcnt(0)\ns_barrier")
    a("s_cmp_eq_u32 s58, 0\ns_cbranch_scc0 L_exit")
    stamp(4)
    for w in range(4):
        a(f"ds_read_b128 v[{32+4*w}:{35+4*w}], v1 offset:{ACC + 1024*w}")
        a(f"ds_read_b64 v[{48+2*w}:{49+2*w}], v63 offset:{MLL + 16*w}")
    a("s_waitcnt lgkmcnt(0)")
    a("v_max3_f32 v16, v48, v50, v52\nv_max_f32 v16, v16, v54")
    for w in range(4): a(f"v_sub_f32 v{24+w}, v{48+2*w}, v16")
    for w in range(4): a(f"v_exp_f32 v{24+w}, v{24+w}")
    a("v_mul_f32 v17, v24, v49\nv_fmac_f32 v17, v25, v51\nv_fmac_f32 v17, v26, v53\nv_fmac_f32 v17, v27, v55")
    for r in range(4):
        a(f"v_mul_f32 v{20+r}, v24, v{32+r}")
        for w in range(1, 4): a(f"v_fmac_f32 v{20+r}, v{24+w}, v{32+4*w+r}")
    a(f"s_mul_i32 s6, s56, 1152\ns_add_u32 s6, s6, {AP:#x}")
    a("buffer_store_dwordx4 v[20:23], v1, s[40:43], s6 offen sc1")
    a("s_mov_b64 exec, 0x101\nbuffer_store_dwordx2 v[16:17], v63, s[40:43], s6 offen offset:1024 sc1\ns_mov_b64 exec, -1")
    stamp(5)

    a("L_exit:")
    if stamps:
        a("s_memrealtime s[84:85]\ns_waitcnt lgkmcnt(0) vmcnt(0)")
        a("s_getreg_b32 s6, hwreg(HW_REG_XCC_ID)")
        a(f"s_lshl_b32 s7, s2, 3\ns_add_u32 s7, s7, s3\ns_mul_i32 s7, s7, 48\ns_add_u32 s7, s7, {STAMP:#x}")
        for k in range(8): a(f"v_mov_b32 v{100+k}, s{92+k}")
        a("v_mov_b32 v108, s84\nv_mov_b32 v109, s6\nv_mov_b32 v110, 0\nv_mov_b32 v111, 0\nv_mov_b32 v99, 0")
        a("s_mov_b64 exec, 1")
        a("buffer_store_dwordx4 v[100:103], v99, s[40:43], s7 offen\nbuffer_store_dwordx4 v[104:107], v99, s[40:43], s7 offen offset:16\nbuffer_store_dwordx4 v[108:111], v99, s[40:43], s7 offen offset:32")
    a("L_end:")
    a("s_endpgm")
    hdr = header(256, 512, LDS_SIZE, comments=open("parallel_sum__gqa_block_cached__glu_gated_geglu__decode.s.ref").read().split("; Override")[0].strip().split("\n"))
    return a.text(hdr, footer(256, 102, 128), verbose=True)

if __name__ == "__main__":
    kw = {}
    for arg in sys.argv[2:]:
        k, v = arg.split("="); kw[k] = eval(v)
    open(sys.argv[1], "w").write(gen(**kw))
```

```python
import sys
from asmlib import *

QP = 0x0
AP = 0x20000
L2 = 0x68000
FP = 0x71000
GOFF = 0x99800
CNT = 0x9A000
WS_SIZE = 0x9E000
STAMP = 0x100000
DBGO = 0x120000
XS = 0x0; QL = 0x900; FLG = 0xB00; MLL = 0xB40; ACC = 0xC00; SCR = 0x2000; HS = 0x4000; SCR2 = 0x4400; DQ = 0x6800; TK = 0x6C00; LDS_SIZE = 0x6C40
SPIN_LIMIT = 0x40000
VL4, VL16, VFOLD, VC16, VR8, VZ = 120, 121, 122, 123, 124, 125

def rounds_table(nf_rounds=6.9):
    tabs = {}
    for grp, nf in (("lo", 5), ("hi", 4)):
        extra = [1.0 if c < 9 else (0.5 if c == 9 else (nf_rounds if (10 <= c < 10 + nf) else 0.0)) for c in range(16)]
        avg = (1024 + sum(extra)) / 16
        n = [int(avg - e) for e in extra]
        rem = 1024 - sum(n)
        order = sorted(range(16), key=lambda c: -((avg - extra[c]) - n[c]))
        for c in order[:rem]: n[c] += 1
        assert sum(n) == 1024
        tabs[grp] = n
    return tabs

def gen(NS=6, L=3, P=160, LA=3, stamps=False, pace=None, kvpol="nt", wpol="nt", W=12, dbg=False, nf_rounds=6.9):
    a = Asm()
    def stamp(k):
        if stamps:
            a(f"s_memrealtime s[84:85]\ns_waitcnt lgkmcnt(0)\ns_mov_b32 s{92+k}, s84")
    def srd(base, plo, size):
        a(f"s_mov_b32 s{base}, s{plo}\ns_mov_b32 s{base+1}, s{plo+1}\ns_mov_b32 s{base+2}, {size:#x}\ns_mov_b32 s{base+3}, 0x20000")
    uid = [0]
    def lab(n):
        uid[0] += 1; return f"L_{n}_{uid[0]}"
    def spin_lds(flagoff, want, vtmp, vzero):
        L = lab("sp"); D = lab("spd")
        a("s_mov_b32 s82, 0")
        a(f"{L}:")
        a(f"ds_read_b32 v{vtmp}, v{vzero} offset:{FLG+flagoff}")
        a("s_waitcnt lgkmcnt(0)")
        a(f"v_readfirstlane_b32 s6, v{vtmp}")
        a(f"s_cmp_eq_u32 s6, {want}\ns_cbranch_scc1 {D}")
        a(f"s_sleep 1\ns_add_u32 s82, s82, 1\ns_cmp_lt_u32 s82, {SPIN_LIMIT:#x}\ns_cbranch_scc1 {L}\ns_branch L_exit")
        a(f"{D}:")
    def allrow_op(op, v, t):
        a(f"v_mov_b32 v{t}, v{v}\nv_permlane16_swap_b32 v{v}, v{t}\n{op} v{v}, v{v}, v{t}")
        a(f"v_mov_b32 v{t}, v{v}\nv_permlane32_swap_b32 v{v}, v{t}\n{op} v{v}, v{v}, v{t}")
    def wave_sum(v, t):
        for r in (8, 4, 2, 1):
            a(f"v_add_f32_dpp v{v}, v{v}, v{v} row_ror:{r} row_mask:0xf bank_mask:0xf")
        allrow_op("v_add_f32", v, t)
    def rbf(dst, src):
        a(f"v_cvt_pk_bf16_f32 v{dst}, v{src}, v{src}\nv_and_b32 v{dst}, s90, v{dst}")
    def treduce(x):
        a(f"v_permlane16_swap_b32 v{x}, v{x+1}\nv_permlane16_swap_b32 v{x+2}, v{x+3}")
        a(f"v_add_f32 v{x}, v{x}, v{x+1}\nv_add_f32 v{x+2}, v{x+2}, v{x+3}")
        a(f"v_permlane32_swap_b32 v{x}, v{x+2}\nv_add_f32 v{x}, v{x}, v{x+2}")
    def buildB(dst, src):
        for q in range(4): a(f"v_and_b32 v{dst+q}, v{src}, v{2+q}")
    def valid_check(regs, t, retry_label):
        r = list(regs)
        a(f"v_max3_u32 v{t}, v{r[0]}, v{r[1]}, v{r[2]}")
        r = r[3:]
        while len(r) >= 2:
            a(f"v_max3_u32 v{t}, v{t}, v{r[0]}, v{r[1]}"); r = r[2:]
        if r: a(f"v_max_u32 v{t}, v{t}, v{r[0]}")
        a(f"v_cmp_eq_u32 vcc, -1, v{t}\ns_cmp_lg_u64 vcc, 0\ns_cbranch_scc1 {retry_label}")
    def tag_check(regs, t0, t1, retry_label):
        r = list(regs)
        a(f"v_min3_u32 v{t0}, v{r[0]}, v{r[1]}, v{r[2]}\nv_max3_u32 v{t1}, v{r[0]}, v{r[1]}, v{r[2]}")
        r = r[3:]
        while len(r) >= 2:
            a(f"v_min3_u32 v{t0}, v{t0}, v{r[0]}, v{r[1]}\nv_max3_u32 v{t1}, v{t1}, v{r[0]}, v{r[1]}"); r = r[2:]
        if r: a(f"v_min_u32 v{t0}, v{t0}, v{r[0]}\nv_max_u32 v{t1}, v{t1}, v{r[0]}")
        a(f"v_cmp_ne_u32 vcc, s91, v{t0}\ns_cmp_lg_u64 vcc, 0\ns_cbranch_scc1 {retry_label}")
        a(f"v_cmp_ne_u32 vcc, s91, v{t1}\ns_cmp_lg_u64 vcc, 0\ns_cbranch_scc1 {retry_label}")
    def spin_guard(loop_label, sleep):
        a(f"s_sleep {sleep}\ns_add_u32 s82, s82, 1\ns_cmp_lt_u32 s82, {SPIN_LIMIT:#x}\ns_cbranch_scc1 {loop_label}\ns_branch L_exit")
    def mfma(acc, A, B):
        a(f"v_mfma_f32_16x16x32_bf16 v[{acc}:{acc+3}], {A}, v[{B}:{B+3}], v[{acc}:{acc+3}]")
    def zero(regs):
        for r in regs: a(f"v_mov_b32 v{r}, 0")

    tabs = rounds_table(nf_rounds)
    def table_lookup():
        ent = []
        for grp in ("lo", "hi"):
            st = 0
            for n in tabs[grp]:
                n -= P // 16
                assert 32 <= n < 64 + 32
                ent.append(st | ((n - 40) << 11)); st += n
            assert st == 1024 - P
        for i in range(16): a(f"s_mov_b32 s{64+i}, {ent[2*i] | (ent[2*i+1] << 16):#x}")
        a("s_lshr_b32 s6, s4, 3\ns_lshl_b32 s6, s6, 4\ns_add_u32 s6, s6, s5")
        a("s_lshr_b32 s7, s6, 1\ns_mov_b32 m0, s7\ns_and_b32 s6, s6, 1\ns_lshl_b32 s6, s6, 4\ns_movrels_b32 s7, s64")
        a("s_lshr_b32 s7, s7, s6\ns_and_b32 s62, s7, 0x7ff\ns_bfe_u32 s67, s7, 0x5000b\ns_add_u32 s67, s67, 40")

    a("s_cmp_ge_u32 s2, 256\ns_cbranch_scc1 L_end")
    a("s_load_dwordx16 s[8:23], s[0:1], 0\ns_load_dwordx8 s[24:31], s[0:1], 64")
    if stamps: a("s_memrealtime s[84:85]")
    a("v_lshrrev_b32 v1, 6, v0\nv_and_b32 v0, 63, v0")
    a("s_lshr_b32 s4, s2, 4\ns_and_b32 s5, s2, 15")
    a("v_readfirstlane_b32 s3, v1")
    a("s_mov_b32 s88, 0x3fb8aa3b\ns_mov_b32 s89, 0x3db504f3\ns_mov_b32 s90, 0xffff0000")
    a("v_and_b32 v6, 1, v0\nv_lshlrev_b32 v6, 4, v6\nv_mov_b32 v7, 0xffff\nv_lshlrev_b32 v7, v6, v7\nv_bfe_u32 v8, v0, 1, 2")
    for q in range(4):
        a(f"v_cmp_eq_u32 vcc, {q}, v8\nv_cndmask_b32 v{2+q}, 0, v7, vcc")
    a("s_lshl_b32 s56, s4, 4\ns_add_u32 s56, s56, s5")
    a("s_waitcnt lgkmcnt(0)")
    if stamps:
        a("s_mov_b32 s92, s84")
        for k in range(1, 8): a(f"s_mov_b32 s{92+k}, 0")
    srd(40, 30, DBGO + 0x20000 if (stamps or dbg) else WS_SIZE)
    a("s_cmp_ge_u32 s3, 4\ns_cbranch_scc1 L_stream")

    a(f"v_mov_b32 v{VZ}, 0\nv_lshlrev_b32 v{VL4}, 2, v0\nv_lshlrev_b32 v{VL16}, 4, v0")
    a(f"v_lshrrev_b32 v{VR8}, 3, v0\nv_and_b32 v{VC16}, 7, v0\nv_lshlrev_b32 v{VC16}, 4, v{VC16}")
    a(f"v_lshrrev_b32 v6, 5, v0\nv_lshlrev_b32 v6, 8, v6\nv_and_b32 v7, 3, v{VR8}\nv_lshlrev_b32 v7, 2, v7\nv_add3_u32 v{VFOLD}, v6, v7, v{VC16}")
    a("s_sub_u32 s57, s5, 10\ns_lshl_b32 s57, s57, 4\ns_add_u32 s57, s57, s4")
    a("s_cmp_eq_u32 s3, 0\ns_cbranch_scc1 L_h0")
    a("s_cmp_eq_u32 s3, 1\ns_cbranch_scc1 L_h1")
    a("s_barrier")
    a("s_branch L_hwait")

    a("L_h1:")
    a("v_mov_b32 v10, -1\nv_mov_b32 v11, -1\nv_mov_b32 v12, -1\nv_mov_b32 v13, -1")
    a(f"s_mul_i32 s6, s56, 1152\ns_add_u32 s6, s6, {AP:#x}")
    a(f"buffer_store_dwordx4 v[10:13], v{VL16}, s[40:43], s6 offen sc1")
    a(f"s_mov_b64 exec, 0xf\nbuffer_store_dword v10, v{VL4}, s[40:43], s6 offen offset:1024 sc1\ns_mov_b64 exec, -1")
    a("s_cmp_lt_u32 s5, 9\ns_cbranch_scc0 L_h1_nowo")
    a(f"s_lshl_b32 s6, s5, 4\ns_add_u32 s6, s6, s4\ns_lshl_b32 s6, s6, 8\ns_add_u32 s6, s6, {L2:#x}")
    a(f"buffer_store_dword v10, v{VL4}, s[40:43], s6 offen sc1")
    a("L_h1_nowo:")
    a("s_cmp_lt_u32 s57, 72\ns_cbranch_scc0 L_h1_noffn")
    a(f"s_mul_i32 s6, s57, 2304\ns_add_u32 s6, s6, {FP:#x}")
    a(f"buffer_store_dwordx4 v[10:13], v{VL16}, s[40:43], s6 offen sc1")
    a(f"buffer_store_dwordx4 v[10:13], v{VL16}, s[40:43], s6 offen offset:1024 sc1")
    a(f"buffer_store_dword v10, v{VL4}, s[40:43], s6 offen offset:2048 sc1")
    a("L_h1_noffn:")
    a("s_cmp_eq_u32 s5, 0\ns_cbranch_scc0 L_h1_nocnt")
    a(f"s_lshl_b32 s6, s4, 10\ns_add_u32 s6, s6, {CNT:#x}\nv_mov_b32 v14, 0\ns_mov_b64 exec, 1")
    a(f"buffer_store_dword v14, v{VZ}, s[40:43], s6 offen sc1\ns_mov_b64 exec, -1")
    a("L_h1_nocnt:")
    a("s_barrier")
    a("s_waitcnt vmcnt(0)")
    a("v_mov_b32 v10, 1")
    a(f"ds_write_b32 v{VZ}, v10 offset:{FLG+4}")
    stamp(1)
    a("s_branch L_hwait")

    a("L_h0:")
    srd(32, 8, 1152)
    srd(36, 14, 576 * 8192)
    a("v_lshlrev_b32 v8, 1, v0")
    for i in range(9):
        a(f"buffer_load_ushort v{10+i}, v8, s[32:35], 0 offen offset:{128*i}")
    a(f"v_lshlrev_b32 v6, 13, v{VR8}\nv_add_u32 v6, v6, v{VC16}")
    a("s_lshr_b32 s58, s5, 2\ns_mul_i32 s59, s58, 144")
    a("s_lshl_b32 s6, s59, 13\ns_lshl_b32 s7, s4, 9\ns_add_u32 s6, s6, s7\ns_and_b32 s7, s5, 3\ns_lshl_b32 s7, s7, 7\ns_add_u32 s6, s6, s7")
    for t in range(18):
        a(f"buffer_load_dwordx4 a[{4*t}:{4*t+3}], v6, s[36:39], s6 offen {wpol}")
        if t < 17: a("s_add_u32 s6, s6, 0x10000")
    a(f"ds_write_b32 v{VZ}, v{VZ} offset:{FLG}\nds_write_b32 v{VZ}, v{VZ} offset:{FLG+4}\nds_write_b32 v{VZ}, v{VZ} offset:{FLG+8}")
    a("v_mov_b32 v20, -1\nv_mov_b32 v21, -1\nv_mov_b32 v22, -1\nv_mov_b32 v23, -1")
    a(f"ds_write_b128 v{VL16}, v[20:23] offset:{DQ}")
    a(f"v_mov_b32 v24, {4*NS}\nds_write_b32 v{VZ}, v24 offset:{TK}")
    a("s_waitcnt lgkmcnt(0)\ns_barrier")
    a(f"s_load_dword s91, s[30:31], {GOFF:#x}")
    a("s_waitcnt vmcnt(18)")
    stamp(1)
    for i in range(9): a(f"v_lshlrev_b32 v{10+i}, 16, v{10+i}")
    a("v_add_f32 v19, v10, v11")
    for i in range(2, 9): a(f"v_add_f32 v19, v19, v{10+i}")
    wave_sum(19, 20)
    a("v_mul_f32 v19, 0x3ae38e39, v19")
    rbf(21, 19)
    a("v_sub_f32 v22, v10, v19\nv_mul_f32 v23, v22, v22")
    for i in range(1, 9):
        a(f"v_sub_f32 v22, v{10+i}, v19\nv_fmac_f32 v23, v22, v22")
    wave_sum(23, 20)
    a("v_mul_f32 v23, 0x3ae38e39, v23")
    rbf(23, 23)
    a("v_add_f32 v23, 0x3727c5ac, v23")
    rbf(23, 23)
    a("v_sqrt_f32 v23, v23")
    rbf(23, 23)
    a("v_rcp_f32 v24, v23")
    for i in range(9):
        a(f"v_sub_f32 v22, v{10+i}, v21")
        rbf(22, 22)
        a("v_mul_f32 v25, v22, v24\nv_fma_f32 v26, -v25, v23, v22\nv_fma_f32 v25, v26, v24, v25")
        a(f"v_cvt_pk_bf16_f32 v{48+i}, v25, v25")
        a(f"ds_write_b32 v{VL4}, v{48+i} offset:{XS + 256*i}")
    a(f"s_lshl_b32 s6, s59, 2\nv_lshlrev_b32 v7, 2, v{VR8}\nv_add_u32 v7, s6, v7")
    for t in range(18):
        a(f"ds_read_b32 v{64+t}, v7 offset:{XS + 32*t}")
    stamp(2)
    zero(range(20, 24))
    a("s_waitcnt lgkmcnt(0)")
    a("s_add_u32 s91, s91, 1")
    for t in range(18):
        b = 24 + 4 * (t & 1)
        buildB(b, 64 + t)
        a(f"s_waitcnt vmcnt({17 - t})")
        mfma(20, f"a[{4*t}:{4*t+3}]", b)
    a(f"ds_write_b128 v{VL16}, v[20:23] offset:{SCR}")
    a(f"ds_read_b32 v24, v{VFOLD} offset:{SCR}\nds_read_b32 v25, v{VFOLD} offset:{SCR+640}")
    a("s_waitcnt lgkmcnt(0)")
    a("v_add_f32 v24, v24, v25\nv_mov_b32 v25, s91")
    spin_lds(4, 1, 26, VZ)
    a(f"s_lshl_b32 s6, s56, 9\ns_add_u32 s6, s6, {QP:#x}\nv_lshlrev_b32 v8, 3, v0")
    a(f"buffer_store_dwordx2 v[24:25], v8, s[40:43], s6 offen sc1")
    stamp(3)
    a(f"s_lshl_b32 s6, s4, 13\ns_add_u32 s6, s6, {QP:#x}\ns_add_u32 s7, s6, 4096\nv_lshlrev_b32 v8, 5, v0")
    a("s_mov_b32 s82, 0")
    a("L_h0_gq:")
    for k in range(4):
        for hf in range(2):
            r = 64 + 8 * k + 4 * hf
            a(f"buffer_load_dwordx4 v[{r}:{r+3}], v8, s[40:43], s{6 + (k >> 1)} offen offset:{2048*(k & 1) + 16*hf} sc1")
    a("s_waitcnt vmcnt(0)")
    tag_check([65 + 2 * i for i in range(16)], 26, 27, "L_h0_gq_retry")
    stamp(4)
    for r in range(4):
        a(f"v_add_f32 v{64+2*r}, v{64+2*r}, v{72+2*r}\nv_add_f32 v{64+2*r}, v{64+2*r}, v{80+2*r}\nv_add_f32 v{64+2*r}, v{64+2*r}, v{88+2*r}")
    a("v_cvt_pk_bf16_f32 v64, v64, v66\nv_cvt_pk_bf16_f32 v65, v68, v70")
    a("v_lshlrev_b32 v8, 3, v0")
    a(f"ds_write_b64 v8, v[64:65] offset:{QL}")
    a("v_mov_b32 v10, 1\ns_waitcnt lgkmcnt(0)")
    a(f"ds_write_b32 v{VZ}, v10 offset:{FLG}")
    if dbg:
        a(f"s_lshl_b32 s6, s2, 9\ns_add_u32 s6, s6, {DBGO:#x}")
        a("buffer_store_dwordx2 v[64:65], v8, s[40:43], s6 offen")
    stamp(5)
    a("s_branch L_hjob")
    a("L_h0_gq_retry:")
    spin_guard("L_h0_gq", 1)

    a("L_hwait:")
    spin_lds(0, 1, 26, VZ)
    a("L_hjob:")
    a("s_cmp_lt_u32 s5, 9\ns_cbranch_scc1 L_job_wo")
    a("s_cmp_eq_u32 s5, 9\ns_cbranch_scc1 L_job_fin")
    a("s_cmp_eq_u32 s3, 0\ns_cbranch_scc1 L_preB1")
    a("s_cmp_lt_u32 s57, 72\ns_cbranch_scc1 L_job_ffn")

    a("L_preB1:")
    a("s_cmp_eq_u32 s3, 0\ns_cbranch_scc0 L_B1")
    table_lookup()
    a(f"s_lshl_b32 s72, s4, 10\ns_add_u32 s72, s72, {CNT:#x}")
    a(f"s_mov_b32 s73, 0")
    a("s_lshl_b32 s74, s67, 2")
    a("s_mov_b32 s82, 0")
    a("L_disp:")
    a(f"ds_read_b32 v96, v{VZ} offset:{TK}")
    a("s_waitcnt lgkmcnt(0)")
    a("v_readfirstlane_b32 s75, v96")
    a(f"s_sub_u32 s75, s75, s74\ns_ashr_i32 s75, s75, 2\ns_add_u32 s75, s75, {1 + LA}\ns_sub_u32 s75, s75, s73")
    a("s_cmp_gt_i32 s75, 0\ns_cbranch_scc1 L_disp_go")
    spin_guard("L_disp", 4)
    a("L_disp_go:")
    a("s_min_u32 s75, s75, 4")
    a("v_mov_b32 v96, s75\ns_mov_b64 exec, 1")
    a(f"buffer_atomic_add v96, v{VZ}, s[40:43], s72 offen sc0 sc1")
    a("s_waitcnt vmcnt(0)")
    a("v_readfirstlane_b32 s76, v96")
    a("s_lshl_b32 s6, 1, s75\ns_sub_u32 s6, s6, 1\ns_mov_b32 exec_lo, s6")
    a(f"v_add_u32 v96, s76, v0\nv_add_u32 v97, {1024 - P}, v96\nv_lshlrev_b32 v97, 14, v97")
    a(f"v_mov_b32 v98, 0x1000000\nv_cmp_gt_u32 vcc, {P}, v96\nv_cndmask_b32 v97, v98, v97, vcc")
    a(f"s_lshl_b32 s6, s73, 2\nv_add_u32 v98, s6, v{VL4}")
    a(f"ds_write_b32 v98, v97 offset:{DQ}")
    a("s_mov_b64 exec, -1")
    a("s_add_u32 s73, s73, s75\ns_add_u32 s76, s76, s75\ns_mov_b32 s82, 0")
    a(f"s_cmp_le_u32 s76, {P}\ns_cbranch_scc1 L_disp")
    a("L_B1:")
    srd(48, 26, 1152)
    a("v_lshrrev_b32 v88, 4, v0\nv_and_b32 v89, 15, v0")
    a("v_mul_u32_u24 v94, 1152, v88\nv_lshlrev_b32 v90, 4, v89\nv_add_u32 v90, v94, v90")
    a("v_bfe_u32 v91, v0, 3, 1\nv_lshlrev_b32 v91, 3, v91\nv_add3_u32 v91, v94, v91, s91x".replace("s91x", "v91") if False else "v_bfe_u32 v91, v0, 3, 1\nv_lshlrev_b32 v91, 3, v91\nv_add_u32 v91, v94, v91\nv_add_u32 v91, 1024, v91")
    a(f"v_lshlrev_b32 v92, 2, v{VR8}")
    a("v_lshlrev_b32 v93, 3, v89\nv_lshlrev_b32 v94, 1, v88\nv_add_u32 v93, v93, v94\ns_lshl_b32 s61, s4, 7")
    stamp(6)
    a("s_waitcnt lgkmcnt(0)\ns_barrier")
    a("s_cmp_lt_u32 s5, 9\ns_cbranch_scc1 L_wo_post")
    a("s_cmp_eq_u32 s5, 9\ns_cbranch_scc0 L_exit")
    a("s_cmp_lt_u32 s4, 9\ns_cbranch_scc0 L_exit")
    a("s_cmp_eq_u32 s3, 0\ns_cbranch_scc1 L_fin_post")
    a("s_branch L_exit")

    a("L_job_wo:")
    srd(36, 16, 4096 * 1152)
    a(f"v_mul_u32_u24 v6, 1152, v{VR8}\nv_add_u32 v6, v6, v{VC16}")
    a("s_lshl_b32 s6, s4, 8\ns_lshl_b32 s7, s3, 5\ns_add_u32 s6, s6, s7\ns_mul_i32 s6, s6, 1152\ns_lshl_b32 s7, s5, 7\ns_add_u32 s6, s6, s7")
    for t in range(8):
        off = (128 * (t >> 2) + 8 * (t & 3)) * 1152
        a(f"s_add_u32 s7, s6, {off}")
        a(f"buffer_load_dwordx4 a[{4*t}:{4*t+3}], v6, s[36:39], s7 offen {wpol}")
    a("s_waitcnt vmcnt(0)")
    a("s_branch L_preB1")
    a("L_wo_post:")
    a(f"s_mul_i32 s60, s4, {16*1152}\ns_add_u32 s60, s60, {AP:#x}")
    for i in range(4): a(f"s_add_u32 s{64+i}, s60, {4608*i}")
    a("s_lshl_b32 s7, s3, 8")
    for i in range(4): a(f"s_add_u32 s{68+i}, s{64+i}, s7")
    a("s_mov_b32 s82, 0")
    a("L_wo_g:")
    for i in range(4):
        a(f"buffer_load_dwordx4 v[{64+4*i}:{67+4*i}], v90, s[40:43], s{68+i} offen sc1")
        a(f"buffer_load_dwordx2 v[{80+2*i}:{81+2*i}], v91, s[40:43], s{64+i} offen sc1")
    a("s_waitcnt vmcnt(0)")
    valid_check(range(64, 88), 26, "L_wo_retry")
    a("v_max3_f32 v20, v80, v82, v84\nv_max_f32 v20, v20, v86")
    allrow_op("v_max_f32", 20, 21)
    for i in range(4): a(f"v_sub_f32 v{24+i}, v{80+2*i}, v20")
    for i in range(4): a(f"v_exp_f32 v{24+i}, v{24+i}")
    a("v_mul_f32 v22, v24, v81\nv_fmac_f32 v22, v25, v83\nv_fmac_f32 v22, v26, v85\nv_fmac_f32 v22, v27, v87")
    allrow_op("v_add_f32", 22, 21)
    for r in range(4):
        a(f"v_mul_f32 v{28+r}, v24, v{64+r}")
        for i in range(1, 4):
            a(f"v_fmac_f32 v{28+r}, v{24+i}, v{64+4*i+r}")
    treduce(28)
    a("v_rcp_f32 v22, v22")
    a("v_mul_f32 v28, v28, v22\nv_cvt_pk_bf16_f32 v28, v28, v28")
    for t in range(8):
        off = (16 * (t & 3) + 8 * (t >> 2)) * 4
        a(f"ds_bpermute_b32 v{32+t}, v92, v28 offset:{off}")
    zero(range(20, 24))
    a("s_waitcnt lgkmcnt(0)")
    for t in range(8):
        b = 44 + 4 * (t & 1)
        buildB(b, 32 + t)
        mfma(20, f"a[{4*t}:{4*t+3}]", b)
    a(f"s_lshl_b32 s6, s3, 11\nv_add_u32 v8, s6, v{VL16}")
    a(f"ds_write_b128 v8, v[20:23] offset:{SCR}")
    a("s_waitcnt lgkmcnt(0)\ns_barrier")
    a("s_cmp_eq_u32 s3, 0\ns_cbranch_scc0 L_exit")
    for w in range(4):
        a(f"ds_read_b32 v{24+2*w}, v{VFOLD} offset:{SCR + 2048*w}\nds_read_b32 v{25+2*w}, v{VFOLD} offset:{SCR + 2048*w + 640}")
    a("s_waitcnt lgkmcnt(0)")
    a("v_add_f32 v24, v24, v25\nv_add_f32 v26, v26, v27\nv_add_f32 v28, v28, v29\nv_add_f32 v30, v30, v31")
    a("v_add_f32 v24, v24, v26\nv_add_f32 v28, v28, v30\nv_add_f32 v24, v24, v28")
    a(f"s_lshl_b32 s6, s5, 4\ns_add_u32 s6, s6, s4\ns_lshl_b32 s6, s6, 8\ns_add_u32 s6, s6, {L2:#x}")
    a(f"buffer_store_dword v24, v{VL4}, s[40:43], s6 offen sc1")
    stamp(7)
    a("s_branch L_exit")
    a("L_wo_retry:")
    spin_guard("L_wo_g", 1)

    a("L_job_fin:")
    a("s_cmp_lt_u32 s4, 9\ns_cbranch_scc0 L_preB1")
    a("s_cmp_eq_u32 s3, 0\ns_cbranch_scc0 L_preB1")
    srd(32, 8, 1152)
    a("v_and_b32 v10, 15, v0\nv_lshlrev_b32 v11, 3, v10\nv_lshrrev_b32 v12, 4, v0\nv_lshlrev_b32 v13, 1, v12\nv_add_u32 v11, v11, v13")
    a("s_lshl_b32 s61, s4, 7")
    a("buffer_load_ushort v15, v11, s[32:35], s61 offen")
    a("v_lshlrev_b32 v16, 9, v0\nv_add_u32 v16, 4, v16")
    a("s_mov_b32 s82, 0")
    a("L_fin_flags:")
    for i in range(4):
        a(f"s_mov_b32 s6, {QP + 32768*i:#x}\nbuffer_load_dword v{20+i}, v16, s[40:43], s6 offen sc1")
    a("s_waitcnt vmcnt(0)")
    tag_check([20, 21, 22, 23], 26, 27, "L_fin_flags_retry")
    a("s_cmp_eq_u32 s4, 0\ns_cbranch_scc0 L_fin_flags_ok")
    a(f"v_mov_b32 v20, s91\ns_mov_b32 s6, {GOFF:#x}\ns_mov_b64 exec, 1")
    a(f"buffer_store_dword v20, v{VZ}, s[40:43], s6 offen sc1\ns_mov_b64 exec, -1")
    a("L_fin_flags_ok:")
    a("v_mul_u32_u24 v12, 2304, v12\nv_lshlrev_b32 v13, 4, v10\nv_add_u32 v12, v12, v13")
    a(f"s_lshl_b32 s62, s4, 8\ns_add_u32 s62, s62, {FP:#x}")
    a(f"v_mul_u32_u24 v16, 2304, v0\nv_min_u32 v18, 7, v0\nv_mul_u32_u24 v18, 2304, v18\ns_add_u32 s63, s62, {64*2304}")
    a("s_mov_b32 s82, 0")
    a("L_fin_p:")
    a("buffer_load_dword v20, v16, s[40:43], s62 offen sc1\nbuffer_load_dword v21, v18, s[40:43], s63 offen sc1\ns_waitcnt vmcnt(0)")
    a("v_max_u32 v20, v20, v21\nv_cmp_eq_u32 vcc, -1, v20\ns_cmp_lg_u64 vcc, 0\ns_cbranch_scc1 L_fin_p_retry")
    a("s_mov_b32 s82, 0")
    a("L_fin_f:")
    a("s_mov_b32 s6, s62")
    for i in range(18):
        a(f"buffer_load_dwordx4 v[{48+4*i}:{51+4*i}], v12, s[40:43], s6 offen sc1")
        if i < 17: a("s_add_u32 s6, s6, 9216")
    a("s_waitcnt vmcnt(0)")
    valid_check(range(48, 120), 26, "L_fin_f_retry")
    for i in range(1, 18):
        for r in range(4):
            a(f"v_add_f32 v{48+r}, v{48+r}, v{48+4*i+r}")
    treduce(48)
    rbf(17, 48)
    a("v_lshlrev_b32 v15, 16, v15")
    a("s_branch L_preB1")
    a("L_fin_post:")
    a(f"s_lshl_b32 s62, s4, 12\ns_add_u32 s62, s62, {L2:#x}")
    a("s_mov_b32 s82, 0")
    a("L_fin_g:")
    for i in range(4):
        a(f"buffer_load_dwordx4 v[{48+4*i}:{51+4*i}], v{VL16}, s[40:43], s62 offen offset:{1024*i} sc1")
    a("s_waitcnt vmcnt(0)")
    valid_check(range(48, 64), 26, "L_fin_g_retry")
    for r in range(4):
        a(f"v_add_f32 v{48+r}, v{48+r}, v{52+r}\nv_add_f32 v{56+r}, v{56+r}, v{60+r}\nv_add_f32 v{48+r}, v{48+r}, v{56+r}")
    treduce(48)
    rbf(48, 48)
    a("v_add_f32 v48, v15, v48")
    rbf(48, 48)
    a("v_add_f32 v48, v48, v17\nv_cvt_pk_bf16_f32 v48, v48, v48")
    a("buffer_store_short v48, v93, s[48:51], s61 offen")
    stamp(7)
    a("s_branch L_exit")
    a("L_fin_flags_retry:")
    spin_guard("L_fin_flags", 32)
    a("L_fin_p_retry:")
    spin_guard("L_fin_p", 64)
    a("L_fin_f_retry:")
    spin_guard("L_fin_f", 16)
    a("L_fin_g_retry:")
    spin_guard("L_fin_g", 1)

    a("L_job_ffn:")
    srd(32, 20, 576 * 9216)
    srd(36, 22, 576 * 9216)
    srd(48, 24, 4608 * 1152)
    a("s_sub_u32 s58, s3, 1")
    a(f"v_mul_u32_u24 v6, 9216, v{VR8}\nv_add_u32 v6, v6, v{VC16}")
    a(f"v_mul_u32_u24 v7, 1152, v{VR8}\nv_add_u32 v7, v7, v{VC16}")
    a(f"s_mul_i32 s60, s58, 192\ns_lshl_b32 s6, s60, 2\nv_lshlrev_b32 v10, 2, v{VR8}\nv_add_u32 v10, s6, v10")
    a("s_mul_i32 s62, s60, 9216\ns_lshl_b32 s6, s57, 7\ns_add_u32 s62, s62, s6")
    a("s_mul_i32 s63, s57, 73728\ns_mul_i32 s6, s58, 384\ns_add_u32 s63, s63, s6")
    loads = []
    for t in range(24): loads += [("g", t), ("u", t)]
    for t in range(8): loads += [("d", t, 0), ("d", t, 1), ("d", t, 2)]
    R = W
    def issue(i):
        ld = loads[i]; r = 4 * (i % R)
        if ld[0] == "g":
            a(f"buffer_load_dwordx4 a[{r}:{r+3}], v6, s[32:35], s62 offen {wpol}")
        elif ld[0] == "u":
            a(f"buffer_load_dwordx4 a[{r}:{r+3}], v6, s[36:39], s62 offen {wpol}\ns_add_u32 s62, s62, {8*9216}")
        else:
            a(f"buffer_load_dwordx4 a[{r}:{r+3}], v7, s[48:51], s63 offen offset:{128*ld[2]} {wpol}")
            if ld[2] == 2: a(f"s_add_u32 s63, s63, {8*1152}")
    for i in range(W): issue(i)
    zero(range(20, 40))
    for i, ld in enumerate(loads):
        if ld[0] == "g":
            t = ld[1]
            if t % 4 == 0:
                for u in range(4): a(f"ds_read_b32 v{48+u}, v10 offset:{XS + 32*(t+u)}")
                a("s_waitcnt lgkmcnt(0)")
            buildB(44, 48 + (t % 4))
        if ld[0] == "d" and ld[1] == 0 and ld[2] == 0:
            a(f"s_lshl_b32 s6, s58, 11\nv_add_u32 v8, s6, v{VL16}")
            a(f"ds_write_b128 v8, v[20:23] offset:{SCR}\nds_write_b128 v8, v[24:27] offset:{SCR+1024}")
            a("v_mov_b32 v11, 1\ns_waitcnt lgkmcnt(0)")
            a(f"s_mov_b64 exec, 1\nds_add_u32 v{VZ}, v11 offset:{FLG+8}\ns_mov_b64 exec, -1")
            spin_lds(8, 3, 26, VZ)
            for w in range(3):
                for m in range(2):
                    a(f"ds_read_b32 v{48+4*w+2*m}, v{VFOLD} offset:{SCR+2048*w+1024*m}\nds_read_b32 v{49+4*w+2*m}, v{VFOLD} offset:{SCR+2048*w+1024*m+640}")
            a("s_waitcnt lgkmcnt(0)")
            a("v_add_f32 v48, v48, v49\nv_add_f32 v52, v52, v53\nv_add_f32 v56, v56, v57\nv_add_f32 v48, v48, v52\nv_add_f32 v48, v48, v56")
            a("v_add_f32 v50, v50, v51\nv_add_f32 v54, v54, v55\nv_add_f32 v58, v58, v59\nv_add_f32 v50, v50, v54\nv_add_f32 v50, v50, v58")
            rbf(48, 48); rbf(50, 50)
            a("v_mul_f32 v52, v48, v48\nv_mul_f32 v52, v52, v48\nv_mul_f32 v52, 0x3d372713, v52\nv_add_f32 v52, v48, v52")
            a("v_mul_f32 v52, 0x3f4c422a, v52\nv_mul_f32 v52, 0xc038aa3b, v52\nv_exp_f32 v52, v52")
            a("v_add_f32 v52, 1.0, v52\nv_rcp_f32 v52, v52")
            a("v_mul_f32 v52, v48, v52")
            rbf(52, 52)
            a("v_mul_f32 v52, v52, v50\nv_cvt_pk_bf16_f32 v52, v52, v52")
            a(f"s_lshl_b32 s6, s58, 8\nv_add_u32 v8, s6, v{VL4}")
            a(f"ds_write_b32 v8, v52 offset:{HS}")
            a(f"v_lshlrev_b32 v8, 2, v{VR8}\nv_add_u32 v8, s6, v8")
            for t in range(8): a(f"ds_read_b32 v{64+t}, v8 offset:{HS + 32*t}")
            a("s_waitcnt lgkmcnt(0)")
        if ld[0] == "d" and ld[2] == 0:
            buildB(44, 64 + ld[1])
        a(f"s_waitcnt vmcnt({min(W, len(loads) - i) - 1})")
        r = 4 * (i % R)
        acc = 20 if ld[0] == "g" else 24 if ld[0] == "u" else 28 + 4 * ld[2]
        mfma(acc, f"a[{r}:{r+3}]", 44)
        if i + W < len(loads): issue(i + W)
    a(f"s_mul_i32 s6, s58, 3072\nv_add_u32 v8, s6, v{VL16}\nv_add_u32 v9, s6, v{VFOLD}")
    for u in range(3):
        a(f"ds_write_b128 v8, v[{28+4*u}:{31+4*u}] offset:{SCR2 + 1024*u}")
    for u in range(3):
        a(f"ds_read_b32 v{48+2*u}, v9 offset:{SCR2 + 1024*u}\nds_read_b32 v{49+2*u}, v9 offset:{SCR2 + 1024*u + 640}")
    a("s_waitcnt lgkmcnt(0)")
    a(f"s_mul_i32 s6, s57, 2304\ns_mul_i32 s7, s58, 768\ns_add_u32 s6, s6, s7\ns_add_u32 s6, s6, {FP:#x}")
    for u in range(3):
        a(f"v_add_f32 v{48+2*u}, v{48+2*u}, v{49+2*u}")
        a(f"buffer_store_dword v{48+2*u}, v{VL4}, s[40:43], s6 offen offset:{256*u} sc1")
    a("s_branch L_preB1")

    a("L_stream:")
    a("s_lshl_b32 s6, s4, 24")
    a("s_add_u32 s32, s10, s6\ns_addc_u32 s33, s11, 0\ns_mov_b32 s34, 0x1000000\ns_mov_b32 s35, 0x20000")
    a("s_add_u32 s36, s12, s6\ns_addc_u32 s37, s13, 0\ns_mov_b32 s38, 0x1000000\ns_mov_b32 s39, 0x20000")
    a("s_sub_u32 s58, s3, 4")
    a("s_barrier")
    table_lookup()
    a("s_lshl_b32 s61, s62, 14")
    a("s_lshl_b32 s60, s58, 12\ns_add_u32 s60, s60, s61")
    a("s_lshl_b32 s67, s67, 2")
    a("v_lshlrev_b32 v1, 4, v0")
    STR = 16384
    def kload(s, so):
        for j in range(4):
            r = 64 + 16 * s + 4 * j
            a(f"buffer_load_dwordx4 v[{r}:{r+3}], v1, s[32:35], {so} offen offset:{1024*j} {kvpol}")
    def vload(s, so):
        for j in range(4):
            r = 16 * s + 4 * j
            a(f"buffer_load_dwordx4 a[{r}:{r+3}], v1, s[36:39], {so} offen offset:{1024*j} {kvpol}")
    for s in range(NS):
        if pace and s: a(f"s_waitcnt vmcnt({pace})")
        kload(s, "s60")
        if pace and s: a(f"s_waitcnt vmcnt({pace})")
        vload(s, "s60")
        a(f"s_mov_b32 s{70+s}, s60\ns_add_u32 s60, s60, {STR}")
    stamp(1)
    a("v_mov_b32 v19, 0")
    spin_lds(0, 1, 62, 19)
    stamp(2)
    a("v_and_b32 v62, 15, v0\nv_lshlrev_b32 v62, 4, v62")
    a(f"ds_read_b128 v[6:9], v62 offset:{QL}\nds_read_b128 v[10:13], v62 offset:{QL+256}")
    a("v_mov_b32 v14, 0xf149f2ca\nv_mov_b32 v16, 0xf149f2ca\nv_mov_b32 v17, 0")
    zero(range(20, 24))
    a("s_mov_b32 s64, 0x1000000")
    a(f"s_mov_b32 s66, {L}\ns_mov_b32 s65, 0")
    a("s_waitcnt lgkmcnt(0)")
    a("L_loop:")
    S0, S1, Q0, Q1 = 24, 28, 6, 10
    for s in range(NS):
        kb = 64 + 16 * s; vb = 16 * s; rs = (s + L) % NS
        a(f"s_cmp_ge_u32 s{70+s}, s64\ns_cbranch_scc1 L_loop_end")
        a(f"s_cmp_ge_u32 s65, s64\ns_cbranch_scc1 L_notk_{s}")
        if s < NS - L: a(f"s_cmp_lt_u32 s66, {NS}\ns_cbranch_scc1 L_notk_{s}")
        a(f"v_mov_b32 v62, 0\nv_mov_b32 v63, 1\ns_mov_b64 exec, 1\nds_add_rtn_u32 v63, v62, v63 offset:{TK}\ns_mov_b64 exec, -1")
        a(f"L_notk_{s}:")
        a(f"s_waitcnt vmcnt({8*L-4})")
        for e in range(4):
            for j in range(4):
                for (S, Q) in ((S0, Q0), (S1, Q1)):
                    if e == 0: a(f"v_dot2_f32_bf16 v{S+j}, v{kb+4*j}, v{Q}, 0")
                    else: a(f"v_dot2c_f32_bf16 v{S+j}, v{kb+4*j+e}, v{Q+e}")
        if s < NS - L: a(f"s_cmp_lt_u32 s66, {NS}\ns_cbranch_scc1 L_skipK_{s}")
        a(f"s_cmp_ge_u32 s65, s64\ns_cbranch_scc1 L_back_{s}")
        a("s_waitcnt lgkmcnt(0)\nv_readfirstlane_b32 s6, v63")
        a(f"s_cmp_lt_u32 s6, s67\ns_cbranch_scc0 L_dyn_{s}")
        a("s_lshl_b32 s65, s6, 12\ns_add_u32 s65, s65, s61")
        a(f"L_back_{s}:")
        a(f"s_mov_b32 s{70+rs}, s65")
        kload(rs, "s65")
        if s < NS - L: a(f"L_skipK_{s}:")
        for j in range(4): a(f"v_add_f32_dpp v{S0+j}, v{S0+j}, v{S0+j} row_ror:8 row_mask:0xf bank_mask:0x3")
        for j in range(4): a(f"v_add_f32_dpp v{S0+j}, v{S1+j}, v{S1+j} row_ror:8 row_mask:0xf bank_mask:0xc")
        for m in ("row_half_mirror", "quad_perm:[1,0,3,2]", "quad_perm:[2,3,0,1]"):
            for j in range(4): a(f"v_add_f32_dpp v{S0+j}, v{S0+j}, v{S0+j} {m} row_mask:0xf bank_mask:0xf")
        a("v_cvt_pk_bf16_f32 v52, v24, v25\nv_cvt_pk_bf16_f32 v53, v26, v27")
        a("v_lshlrev_b32 v48, 16, v52\nv_and_b32 v49, s90, v52\nv_lshlrev_b32 v50, 16, v53\nv_and_b32 v51, s90, v53")
        for j in range(4): a(f"v_mul_f32 v{48+j}, s89, v{48+j}")
        a("v_cvt_pk_bf16_f32 v52, v48, v49\nv_cvt_pk_bf16_f32 v53, v50, v51")
        a("v_lshlrev_b32 v54, 16, v52\nv_and_b32 v55, s90, v52\nv_lshlrev_b32 v56, 16, v53\nv_and_b32 v57, s90, v53")
        a("v_max3_f32 v19, v54, v55, v56\nv_max3_f32 v19, v19, v57, v14")
        a("v_mov_b32 v62, v19\nv_permlane16_swap_b32 v19, v62\nv_max_f32 v19, v19, v62")
        a("v_mov_b32 v62, v19\nv_permlane32_swap_b32 v19, v62\nv_max_f32 v14, v19, v62")
        a("v_mul_f32 v15, s88, v14\nv_sub_f32 v18, v16, v15")
        for j in range(4): a(f"v_fma_f32 v{54+j}, v{54+j}, s88, -v15")
        a("v_exp_f32 v18, v18")
        for j in range(4): a(f"v_exp_f32 v{54+j}, v{54+j}")
        a("v_mov_b32 v16, v15")
        for j in range(4): a(f"v_cvt_pk_bf16_f32 v{58+j}, v{54+j}, v{54+j}")
        a("v_add_f32 v19, v54, v55\nv_add_f32 v62, v56, v57")
        for r in range(4): a(f"v_mul_f32 v{20+r}, v{20+r}, v18")
        a("v_add_f32 v19, v19, v62")
        for j in range(4): buildB(32 + 4 * j, 58 + j)
        a("v_fma_f32 v17, v17, v18, v19")
        a(f"s_waitcnt vmcnt({8*L-4})")
        for j in range(4): mfma(20, f"a[{vb+4*j}:{vb+4*j+3}]", 32 + 4 * j)
        if s < NS - L: a(f"s_cmp_lt_u32 s66, {NS}\ns_cbranch_scc1 L_skipV_{s}")
        vload(rs, "s65")
        if s < NS - L: a(f"L_skipV_{s}:")
        a("s_add_u32 s66, s66, 1")
    a("s_branch L_loop")
    for s in range(NS):
        a(f"L_dyn_{s}:")
        a("s_sub_u32 s7, s6, s67\ns_and_b32 s7, s7, -4\nv_mov_b32 v62, s7\ns_and_b32 s6, s6, 3\ns_lshl_b32 s59, s6, 12\ns_mov_b32 s82, 0")
        a(f"L_dynsp_{s}:")
        a(f"ds_read_b32 v63, v62 offset:{DQ}\ns_waitcnt lgkmcnt(0)\nv_readfirstlane_b32 s65, v63")
        a(f"s_cmp_eq_u32 s65, -1\ns_cbranch_scc1 L_dynw_{s}")
        a(f"s_add_u32 s65, s65, s59\ns_branch L_back_{s}")
        a(f"L_dynw_{s}:")
        a(f"s_sleep 1\ns_add_u32 s82, s82, 1\ns_cmp_lt_u32 s82, {SPIN_LIMIT:#x}\ns_cbranch_scc1 L_dynsp_{s}\ns_branch L_exit")
    a("L_loop_end:")
    stamp(3)
    allrow_op("v_add_f32", 17, 62)
    a(f"s_lshl_b32 s6, s58, 10\nv_add_u32 v62, s6, v1")
    a(f"ds_write_b128 v62, v[20:23] offset:{ACC}")
    a("v_bfe_u32 v63, v0, 3, 1\nv_lshlrev_b32 v63, 3, v63\ns_lshl_b32 s6, s58, 4\nv_add_u32 v62, s6, v63")
    a(f"s_mov_b64 exec, 0x101\nds_write_b64 v62, v[16:17] offset:{MLL}\ns_mov_b64 exec, -1")
    a("s_waitcnt lgkmcnt(0)\ns_barrier")
    a("s_cmp_eq_u32 s58, 0\ns_cbranch_scc0 L_exit")
    stamp(4)
    for w in range(4):
        a(f"ds_read_b128 v[{32+4*w}:{35+4*w}], v1 offset:{ACC + 1024*w}")
        a(f"ds_read_b64 v[{48+2*w}:{49+2*w}], v63 offset:{MLL + 16*w}")
    a("s_waitcnt lgkmcnt(0)")
    a("v_max3_f32 v16, v48, v50, v52\nv_max_f32 v16, v16, v54")
    for w in range(4): a(f"v_sub_f32 v{24+w}, v{48+2*w}, v16")
    for w in range(4): a(f"v_exp_f32 v{24+w}, v{24+w}")
    a("v_mul_f32 v17, v24, v49\nv_fmac_f32 v17, v25, v51\nv_fmac_f32 v17, v26, v53\nv_fmac_f32 v17, v27, v55")
    for r in range(4):
        a(f"v_mul_f32 v{20+r}, v24, v{32+r}")
        for w in range(1, 4): a(f"v_fmac_f32 v{20+r}, v{24+w}, v{32+4*w+r}")
    a(f"s_mul_i32 s6, s56, 1152\ns_add_u32 s6, s6, {AP:#x}")
    a("buffer_store_dwordx4 v[20:23], v1, s[40:43], s6 offen sc1")
    a("s_mov_b64 exec, 0x101\nbuffer_store_dwordx2 v[16:17], v63, s[40:43], s6 offen offset:1024 sc1\ns_mov_b64 exec, -1")
    stamp(5)

    a("L_exit:")
    if stamps:
        a("s_memrealtime s[84:85]\ns_waitcnt lgkmcnt(0) vmcnt(0)")
        a("s_getreg_b32 s6, hwreg(HW_REG_XCC_ID)")
        a(f"s_lshl_b32 s7, s2, 3\ns_add_u32 s7, s7, s3\ns_mul_i32 s7, s7, 48\ns_add_u32 s7, s7, {STAMP:#x}")
        for k in range(8): a(f"v_mov_b32 v{100+k}, s{92+k}")
        a("v_mov_b32 v108, s84\nv_mov_b32 v109, s6\nv_mov_b32 v110, 0\nv_mov_b32 v111, 0\nv_mov_b32 v99, 0")
        a("s_mov_b64 exec, 1")
        a("buffer_store_dwordx4 v[100:103], v99, s[40:43], s7 offen\nbuffer_store_dwordx4 v[104:107], v99, s[40:43], s7 offen offset:16\nbuffer_store_dwordx4 v[108:111], v99, s[40:43], s7 offen offset:32")
    a("L_end:")
    a("s_endpgm")
    hdr = header(256, 512, LDS_SIZE, comments=open("parallel_sum__gqa_block_cached__glu_gated_geglu__decode.s.ref").read().split("; Override")[0].strip().split("\n"))
    accum = max(128, 64 + 16 * NS)
    assert accum + max(16 * NS, 72) <= 256
    return a.text(hdr, footer(256, 102, accum), verbose=True)

if __name__ == "__main__":
    kw = {}
    for arg in sys.argv[2:]:
        k, v = arg.split("="); kw[k] = eval(v)
    open(sys.argv[1], "w").write(gen(**kw))
```

```python
import sys
from asmlib import *

QP = 0x0
AP = 0x20000
L2 = 0x68000
FP = 0x71000
GOFF = 0x99800
CNT = 0x9A000
WS_SIZE = 0xC0000
STAMP = 0x100000
DBGO = 0x120000
XS = 0x0; QL = 0x900; FLG = 0xB00; MLL = 0xB40; ACC = 0xC00; SCR = 0x2000; HS = 0x4000; SCR2 = 0x4400; DQ = 0x6800; TK = 0x6C00; PRG = 0x6C40; LDS_SIZE = 0x6E40
SPIN_LIMIT = 0x100000
VL4, VL16, VFOLD, VC16, VR8, VZ = 120, 121, 122, 123, 124, 125

def rounds_table(nf_rounds=6.9):
    tabs = {}
    for grp, nf in (("lo", 5), ("hi", 4)):
        extra = [1.0 if c < 9 else (0.5 if c == 9 else (nf_rounds if (10 <= c < 10 + nf) else 0.0)) for c in range(16)]
        avg = (1024 + sum(extra)) / 16
        n = [int(avg - e) for e in extra]
        rem = 1024 - sum(n)
        order = sorted(range(16), key=lambda c: -((avg - extra[c]) - n[c]))
        for c in order[:rem]: n[c] += 1
        assert sum(n) == 1024
        tabs[grp] = n
    return tabs

def gen(NS=6, L=3, P=160, LA=3, stamps=False, pace=None, kvpol="nt", wpol="nt", W=12, dbg=False, nf_rounds=6.9, abl_ffn=False, abl_wo=False, ffn_contig=False, prog=False, outpol='', tailst=False, hmix=0, hxor=0, mpoll=True, wodefer=True, cstride=1024, coff=0, fperm=3, vlag=False, ackwait=False, qsleep=1):
    a = Asm()
    def stamp(k):
        if stamps:
            a(f"s_memrealtime s[84:85]\ns_waitcnt lgkmcnt(0)\ns_mov_b32 s{92+k}, s84")
    def srd(base, plo, size):
        a(f"s_mov_b32 s{base}, s{plo}\ns_mov_b32 s{base+1}, s{plo+1}\ns_mov_b32 s{base+2}, {size:#x}\ns_mov_b32 s{base+3}, 0x20000")
    uid = [0]
    def lab(n):
        uid[0] += 1; return f"L_{n}_{uid[0]}"
    def spin_lds(flagoff, want, vtmp, vzero, sleep=1):
        L = lab("sp"); D = lab("spd")
        a("s_mov_b32 s82, 0")
        a(f"{L}:")
        a(f"ds_read_b32 v{vtmp}, v{vzero} offset:{FLG+flagoff}")
        a("s_waitcnt lgkmcnt(0)")
        a(f"v_readfirstlane_b32 s6, v{vtmp}")
        a(f"s_cmp_eq_u32 s6, {want}\ns_cbranch_scc1 {D}")
        a(f"s_sleep {sleep}\ns_add_u32 s82, s82, 1\ns_cmp_lt_u32 s82, {SPIN_LIMIT:#x}\ns_cbranch_scc1 {L}\ns_branch L_exit")
        a(f"{D}:")
    def allrow_op(op, v, t):
        a(f"v_mov_b32 v{t}, v{v}\nv_permlane16_swap_b32 v{v}, v{t}\n{op} v{v}, v{v}, v{t}")
        a(f"v_mov_b32 v{t}, v{v}\nv_permlane32_swap_b32 v{v}, v{t}\n{op} v{v}, v{v}, v{t}")
    def wave_sum(v, t):
        for r in (8, 4, 2, 1):
            a(f"v_add_f32_dpp v{v}, v{v}, v{v} row_ror:{r} row_mask:0xf bank_mask:0xf")
        allrow_op("v_add_f32", v, t)
    def rbf(dst, src):
        a(f"v_cvt_pk_bf16_f32 v{dst}, v{src}, v{src}\nv_and_b32 v{dst}, s90, v{dst}")
    def treduce(x):
        a(f"v_permlane16_swap_b32 v{x}, v{x+1}\nv_permlane16_swap_b32 v{x+2}, v{x+3}")
        a(f"v_add_f32 v{x}, v{x}, v{x+1}\nv_add_f32 v{x+2}, v{x+2}, v{x+3}")
        a(f"v_permlane32_swap_b32 v{x}, v{x+2}\nv_add_f32 v{x}, v{x}, v{x+2}")
    def buildB(dst, src):
        for q in range(4): a(f"v_and_b32 v{dst+q}, v{src}, v{2+q}")
    def valid_check(regs, t, retry_label):
        r = list(regs)
        a(f"v_max3_u32 v{t}, v{r[0]}, v{r[1]}, v{r[2]}")
        r = r[3:]
        while len(r) >= 2:
            a(f"v_max3_u32 v{t}, v{t}, v{r[0]}, v{r[1]}"); r = r[2:]
        if r: a(f"v_max_u32 v{t}, v{t}, v{r[0]}")
        a(f"v_cmp_eq_u32 vcc, -1, v{t}\ns_cmp_lg_u64 vcc, 0\ns_cbranch_scc1 {retry_label}")
    def tag_check(regs, t0, t1, retry_label):
        r = list(regs)
        a(f"v_min3_u32 v{t0}, v{r[0]}, v{r[1]}, v{r[2]}\nv_max3_u32 v{t1}, v{r[0]}, v{r[1]}, v{r[2]}")
        r = r[3:]
        while len(r) >= 2:
            a(f"v_min3_u32 v{t0}, v{t0}, v{r[0]}, v{r[1]}\nv_max3_u32 v{t1}, v{t1}, v{r[0]}, v{r[1]}"); r = r[2:]
        if r: a(f"v_min_u32 v{t0}, v{t0}, v{r[0]}\nv_max_u32 v{t1}, v{t1}, v{r[0]}")
        a(f"v_cmp_ne_u32 vcc, s91, v{t0}\ns_cmp_lg_u64 vcc, 0\ns_cbranch_scc1 {retry_label}")
        a(f"v_cmp_ne_u32 vcc, s91, v{t1}\ns_cmp_lg_u64 vcc, 0\ns_cbranch_scc1 {retry_label}")
    def spin_guard(loop_label, sleep):
        a(f"s_sleep {sleep}\ns_add_u32 s82, s82, 1\ns_cmp_lt_u32 s82, {SPIN_LIMIT:#x}\ns_cbranch_scc1 {loop_label}\ns_branch L_exit")
    def mfma(acc, A, B):
        a(f"v_mfma_f32_16x16x32_bf16 v[{acc}:{acc+3}], {A}, v[{B}:{B+3}], v[{acc}:{acc+3}]")
    def zero(regs):
        for r in regs: a(f"v_mov_b32 v{r}, 0")

    tabs = rounds_table(nf_rounds)
    def table_lookup():
        ent = []
        for grp in ("lo", "hi"):
            st = 0
            for n in tabs[grp]:
                n -= P // 16
                assert 32 <= n < 64 + 32
                ent.append(st | ((n - 40) << 11)); st += n
            assert st == 1024 - P
        for i in range(16): a(f"s_mov_b32 s{64+i}, {ent[2*i] | (ent[2*i+1] << 16):#x}")
        a("s_lshr_b32 s6, s4, 3\ns_lshl_b32 s6, s6, 4\ns_add_u32 s6, s6, s5")
        a("s_lshr_b32 s7, s6, 1\ns_mov_b32 m0, s7\ns_and_b32 s6, s6, 1\ns_lshl_b32 s6, s6, 4\ns_movrels_b32 s7, s64")
        a("s_lshr_b32 s7, s7, s6\ns_and_b32 s62, s7, 0x7ff\ns_bfe_u32 s67, s7, 0x5000b\ns_add_u32 s67, s67, 40")

    a("s_cmp_ge_u32 s2, 256\ns_cbranch_scc1 L_end")
    a("s_load_dwordx16 s[8:23], s[0:1], 0\ns_load_dwordx8 s[24:31], s[0:1], 64")
    if stamps: a("s_memrealtime s[84:85]")
    a("v_lshrrev_b32 v1, 6, v0\nv_and_b32 v0, 63, v0")
    a("s_lshr_b32 s4, s2, 4\ns_and_b32 s5, s2, 15")
    if hmix: a(f"s_and_b32 s6, s2, 7\ns_mul_i32 s6, s6, {hmix}\ns_add_u32 s4, s4, s6\ns_and_b32 s4, s4, 15")
    if hxor: a(f"s_xor_b32 s4, s4, {hxor}")
    a("v_readfirstlane_b32 s3, v1")
    a("s_mov_b32 s88, 0x3fb8aa3b\ns_mov_b32 s89, 0x3db504f3\ns_mov_b32 s90, 0xffff0000")
    a("v_and_b32 v6, 1, v0\nv_lshlrev_b32 v6, 4, v6\nv_mov_b32 v7, 0xffff\nv_lshlrev_b32 v7, v6, v7\nv_bfe_u32 v8, v0, 1, 2")
    for q in range(4):
        a(f"v_cmp_eq_u32 vcc, {q}, v8\nv_cndmask_b32 v{2+q}, 0, v7, vcc")
    a("s_lshl_b32 s56, s4, 4\ns_add_u32 s56, s56, s5")
    a("s_waitcnt lgkmcnt(0)")
    if stamps:
        a("s_mov_b32 s92, s84")
        for k in range(1, 8): a(f"s_mov_b32 s{92+k}, 0")
    srd(40, 30, DBGO + 0x40000 if (stamps or dbg) else WS_SIZE)
    a("s_cmp_ge_u32 s3, 4\ns_cbranch_scc1 L_stream")

    a(f"v_mov_b32 v{VZ}, 0\nv_lshlrev_b32 v{VL4}, 2, v0\nv_lshlrev_b32 v{VL16}, 4, v0")
    a(f"v_lshrrev_b32 v{VR8}, 3, v0\nv_and_b32 v{VC16}, 7, v0\nv_lshlrev_b32 v{VC16}, 4, v{VC16}")
    a(f"v_lshrrev_b32 v6, 5, v0\nv_lshlrev_b32 v6, 8, v6\nv_and_b32 v7, 3, v{VR8}\nv_lshlrev_b32 v7, 2, v7\nv_add3_u32 v{VFOLD}, v6, v7, v{VC16}")
    a(f"s_sub_u32 s57, s5, 10\ns_and_b32 s6, s57, 3\ns_mul_i32 s6, s6, {fperm}\ns_add_u32 s6, s6, s4\ns_and_b32 s6, s6, 15\ns_lshl_b32 s57, s57, 4\ns_add_u32 s57, s57, s6")
    a("s_cmp_eq_u32 s3, 0\ns_cbranch_scc1 L_h0")
    a("s_cmp_eq_u32 s3, 1\ns_cbranch_scc1 L_h1")
    a("s_barrier")
    a("s_branch L_hwait")

    a("L_h1:")
    a("v_mov_b32 v10, -1\nv_mov_b32 v11, -1\nv_mov_b32 v12, -1\nv_mov_b32 v13, -1")
    a(f"s_mul_i32 s6, s56, 1152\ns_add_u32 s6, s6, {AP:#x}")
    a(f"buffer_store_dwordx4 v[10:13], v{VL16}, s[40:43], s6 offen sc1")
    a(f"s_mov_b64 exec, 0xf\nbuffer_store_dword v10, v{VL4}, s[40:43], s6 offen offset:1024 sc1\ns_mov_b64 exec, -1")
    a("s_cmp_lt_u32 s5, 9\ns_cbranch_scc0 L_h1_nowo")
    a(f"s_lshl_b32 s6, s5, 4\ns_add_u32 s6, s6, s4\ns_lshl_b32 s6, s6, 8\ns_add_u32 s6, s6, {L2:#x}")
    a(f"buffer_store_dword v10, v{VL4}, s[40:43], s6 offen sc1")
    a("L_h1_nowo:")
    a("s_cmp_lt_u32 s57, 72\ns_cbranch_scc0 L_h1_noffn")
    a(f"s_mul_i32 s6, s57, 2304\ns_add_u32 s6, s6, {FP:#x}")
    a(f"buffer_store_dwordx4 v[10:13], v{VL16}, s[40:43], s6 offen sc1")
    a(f"buffer_store_dwordx4 v[10:13], v{VL16}, s[40:43], s6 offen offset:1024 sc1")
    a(f"buffer_store_dword v10, v{VL4}, s[40:43], s6 offen offset:2048 sc1")
    a("L_h1_noffn:")
    a("s_cmp_eq_u32 s5, 0\ns_cbranch_scc0 L_h1_nocnt")
    a(f"s_mul_i32 s6, s4, {cstride}\ns_add_u32 s6, s6, {CNT+coff:#x}\nv_mov_b32 v14, 0\ns_mov_b64 exec, 1")
    a(f"buffer_store_dword v14, v{VZ}, s[40:43], s6 offen sc1\ns_mov_b64 exec, -1")
    a("L_h1_nocnt:")
    a("s_barrier")
    a("s_waitcnt vmcnt(0)")
    a("v_mov_b32 v10, 1")
    a(f"ds_write_b32 v{VZ}, v10 offset:{FLG+4}")
    stamp(1)
    a("s_branch L_hwait")

    a("L_h0:")
    srd(32, 8, 1152)
    srd(36, 14, 576 * 8192)
    a("v_lshlrev_b32 v8, 1, v0")
    for i in range(9):
        a(f"buffer_load_ushort v{10+i}, v8, s[32:35], 0 offen offset:{128*i}")
    a(f"v_lshlrev_b32 v6, 13, v{VR8}\nv_add_u32 v6, v6, v{VC16}")
    a("s_lshr_b32 s58, s5, 2\ns_mul_i32 s59, s58, 144")
    a("s_lshl_b32 s6, s59, 13\ns_lshl_b32 s7, s4, 9\ns_add_u32 s6, s6, s7\ns_and_b32 s7, s5, 3\ns_lshl_b32 s7, s7, 7\ns_add_u32 s6, s6, s7")
    for t in range(18):
        a(f"buffer_load_dwordx4 a[{4*t}:{4*t+3}], v6, s[36:39], s6 offen {wpol}")
        if t < 17: a("s_add_u32 s6, s6, 0x10000")
    a(f"ds_write_b32 v{VZ}, v{VZ} offset:{FLG}\nds_write_b32 v{VZ}, v{VZ} offset:{FLG+4}\nds_write_b32 v{VZ}, v{VZ} offset:{FLG+8}\nds_write_b32 v{VZ}, v{VZ} offset:{FLG+12}")
    a("v_mov_b32 v20, -1\nv_mov_b32 v21, -1\nv_mov_b32 v22, -1\nv_mov_b32 v23, -1")
    a(f"ds_write_b128 v{VL16}, v[20:23] offset:{DQ}")
    a(f"v_mov_b32 v24, {4*NS}\nds_write_b32 v{VZ}, v24 offset:{TK}")
    a("s_waitcnt lgkmcnt(0)\ns_barrier")
    a(f"s_load_dword s91, s[30:31], {GOFF:#x}")
    a("s_waitcnt vmcnt(18)")
    stamp(1)
    for i in range(9): a(f"v_lshlrev_b32 v{10+i}, 16, v{10+i}")
    a("v_add_f32 v19, v10, v11")
    for i in range(2, 9): a(f"v_add_f32 v19, v19, v{10+i}")
    wave_sum(19, 20)
    a("v_mul_f32 v19, 0x3ae38e39, v19")
    rbf(21, 19)
    a("v_sub_f32 v22, v10, v19\nv_mul_f32 v23, v22, v22")
    for i in range(1, 9):
        a(f"v_sub_f32 v22, v{10+i}, v19\nv_fmac_f32 v23, v22, v22")
    wave_sum(23, 20)
    a("v_mul_f32 v23, 0x3ae38e39, v23")
    rbf(23, 23)
    a("v_add_f32 v23, 0x3727c5ac, v23")
    rbf(23, 23)
    a("v_sqrt_f32 v23, v23")
    rbf(23, 23)
    a("v_rcp_f32 v24, v23")
    for i in range(9):
        a(f"v_sub_f32 v22, v{10+i}, v21")
        rbf(22, 22)
        a("v_mul_f32 v25, v22, v24\nv_fma_f32 v26, -v25, v23, v22\nv_fma_f32 v25, v26, v24, v25")
        a(f"v_cvt_pk_bf16_f32 v{48+i}, v25, v25")
        a(f"ds_write_b32 v{VL4}, v{48+i} offset:{XS + 256*i}")
    a(f"s_lshl_b32 s6, s59, 2\nv_lshlrev_b32 v7, 2, v{VR8}\nv_add_u32 v7, s6, v7")
    for t in range(18):
        a(f"ds_read_b32 v{64+t}, v7 offset:{XS + 32*t}")
    stamp(2)
    zero(range(20, 24))
    a("s_waitcnt lgkmcnt(0)")
    a("s_add_u32 s91, s91, 1")
    for t in range(18):
        b = 24 + 4 * (t & 1)
        buildB(b, 64 + t)
        a(f"s_waitcnt vmcnt({17 - t})")
        mfma(20, f"a[{4*t}:{4*t+3}]", b)
    a(f"ds_write_b128 v{VL16}, v[20:23] offset:{SCR}")
    a(f"ds_read_b32 v24, v{VFOLD} offset:{SCR}\nds_read_b32 v25, v{VFOLD} offset:{SCR+640}")
    a("s_waitcnt lgkmcnt(0)")
    a("v_add_f32 v24, v24, v25\nv_mov_b32 v25, s91")
    spin_lds(4, 1, 26, VZ)
    a(f"s_lshl_b32 s6, s56, 9\ns_add_u32 s6, s6, {QP:#x}\nv_lshlrev_b32 v8, 3, v0")
    a(f"buffer_store_dwordx2 v[24:25], v8, s[40:43], s6 offen sc1")
    stamp(3)
    if ackwait: a("s_waitcnt vmcnt(0)")
    a(f"s_lshl_b32 s6, s4, 13\ns_add_u32 s6, s6, {QP:#x}\ns_add_u32 s7, s6, 4096\nv_lshlrev_b32 v8, 5, v0")
    a("s_mov_b32 s82, 0")
    a("L_h0_gq:")
    for k in range(4):
        for hf in range(2):
            r = 64 + 8 * k + 4 * hf
            a(f"buffer_load_dwordx4 v[{r}:{r+3}], v8, s[40:43], s{6 + (k >> 1)} offen offset:{2048*(k & 1) + 16*hf} sc1")
    a("s_waitcnt vmcnt(0)")
    tag_check([65 + 2 * i for i in range(16)], 26, 27, "L_h0_gq_retry")
    stamp(4)
    for r in range(4):
        a(f"v_add_f32 v{64+2*r}, v{64+2*r}, v{72+2*r}\nv_add_f32 v{64+2*r}, v{64+2*r}, v{80+2*r}\nv_add_f32 v{64+2*r}, v{64+2*r}, v{88+2*r}")
    a("v_cvt_pk_bf16_f32 v64, v64, v66\nv_cvt_pk_bf16_f32 v65, v68, v70")
    a("v_lshlrev_b32 v8, 3, v0")
    a(f"ds_write_b64 v8, v[64:65] offset:{QL}")
    a("v_mov_b32 v10, 1\ns_waitcnt lgkmcnt(0)")
    a(f"ds_write_b32 v{VZ}, v10 offset:{FLG}")
    if dbg:
        a(f"s_lshl_b32 s6, s2, 9\ns_add_u32 s6, s6, {DBGO:#x}")
        a("buffer_store_dwordx2 v[64:65], v8, s[40:43], s6 offen")
    stamp(5)
    a("s_branch L_hjob")
    a("L_h0_gq_retry:")
    spin_guard("L_h0_gq", qsleep)

    a("L_hwait:")
    spin_lds(0, 1, 26, VZ)
    a("L_hjob:")
    a("s_cmp_lt_u32 s5, 9\ns_cbranch_scc1 L_job_wo")
    a("s_cmp_eq_u32 s5, 9\ns_cbranch_scc1 L_job_fin")
    a("s_cmp_eq_u32 s3, 0\ns_cbranch_scc1 L_preB1")
    if not abl_ffn: a("s_cmp_lt_u32 s57, 72\ns_cbranch_scc1 L_job_ffn")

    a("L_preB1:")
    a("s_cmp_eq_u32 s3, 0\ns_cbranch_scc0 L_B1")
    table_lookup()
    a(f"s_mul_i32 s72, s4, {cstride}\ns_add_u32 s72, s72, {CNT+coff:#x}")
    if prog: a("s_mov_b32 s77, 0\ns_mov_b32 s78, 0")
    a(f"s_mov_b32 s73, 0")
    a("s_lshl_b32 s74, s67, 2")
    a("s_mov_b32 s82, 0")
    a("L_disp:")
    a(f"ds_read_b32 v96, v{VZ} offset:{TK}")
    a("s_waitcnt lgkmcnt(0)")
    a("v_readfirstlane_b32 s75, v96")
    a(f"s_sub_u32 s75, s75, s74\ns_ashr_i32 s75, s75, 2\ns_add_u32 s75, s75, {1 + LA}\ns_sub_u32 s75, s75, s73")
    a("s_cmp_gt_i32 s75, 0\ns_cbranch_scc1 L_disp_go")
    spin_guard("L_disp", 4)
    a("L_disp_go:")
    a("s_min_u32 s75, s75, 4")
    if prog: stamp(4)
    a("v_mov_b32 v96, s75\ns_mov_b64 exec, 1")
    a(f"buffer_atomic_add v96, v{VZ}, s[40:43], s72 offen sc0 sc1")
    a("s_waitcnt vmcnt(0)")
    if prog: a("s_memrealtime s[84:85]\ns_waitcnt lgkmcnt(0)\ns_sub_u32 s6, s84, s96\ns_add_u32 s77, s77, s6\ns_add_u32 s78, s78, 1")
    a("v_readfirstlane_b32 s76, v96")
    a("s_lshl_b32 s6, 1, s75\ns_sub_u32 s6, s6, 1\ns_mov_b32 exec_lo, s6")
    a(f"v_add_u32 v96, s76, v0\nv_add_u32 v97, {1024 - P}, v96\nv_lshlrev_b32 v97, 14, v97")
    a(f"v_mov_b32 v98, 0x1000000\nv_cmp_gt_u32 vcc, {P}, v96\nv_cndmask_b32 v97, v98, v97, vcc")
    a(f"s_lshl_b32 s6, s73, 2\nv_add_u32 v98, s6, v{VL4}")
    a(f"ds_write_b32 v98, v97 offset:{DQ}")
    a("s_mov_b64 exec, -1")
    a("s_add_u32 s73, s73, s75\ns_add_u32 s76, s76, s75\ns_mov_b32 s82, 0")
    a(f"s_cmp_le_u32 s76, {P}\ns_cbranch_scc1 L_disp")
    if prog and stamps: a("s_mov_b32 s93, s73\ns_mov_b32 s94, s77\ns_mov_b32 s95, s78")
    if wodefer:
        a(f"v_mov_b32 v96, 1\nds_write_b32 v{VZ}, v96 offset:{FLG+12}")
        a("s_cmp_lt_u32 s5, 9\ns_cbranch_scc1 L_wo_loads")
    a("L_B1:")
    srd(48, 26, 1152)
    a("v_lshrrev_b32 v88, 4, v0\nv_and_b32 v89, 15, v0")
    a("v_mul_u32_u24 v94, 1152, v88\nv_lshlrev_b32 v90, 4, v89\nv_add_u32 v90, v94, v90")
    a("v_bfe_u32 v91, v0, 3, 1\nv_lshlrev_b32 v91, 3, v91\nv_add3_u32 v91, v94, v91, s91x".replace("s91x", "v91") if False else "v_bfe_u32 v91, v0, 3, 1\nv_lshlrev_b32 v91, 3, v91\nv_add_u32 v91, v94, v91\nv_add_u32 v91, 1024, v91")
    a(f"v_lshlrev_b32 v92, 2, v{VR8}")
    a("v_lshlrev_b32 v93, 3, v89\nv_lshlrev_b32 v94, 1, v88\nv_add_u32 v93, v93, v94\ns_lshl_b32 s61, s4, 7")
    stamp(6)
    a("s_waitcnt lgkmcnt(0)\ns_barrier")
    a("s_cmp_lt_u32 s5, 9\ns_cbranch_scc1 L_wo_post")
    a("s_cmp_eq_u32 s5, 9\ns_cbranch_scc0 L_exit")
    a("s_cmp_lt_u32 s4, 9\ns_cbranch_scc0 L_exit")
    a("s_cmp_eq_u32 s3, 0\ns_cbranch_scc1 L_fin_post")
    a("s_branch L_exit")

    a("L_job_wo:")
    if wodefer:
        a("s_cmp_eq_u32 s3, 0\ns_cbranch_scc1 L_preB1")
        spin_lds(12, 1, 26, VZ, sleep=8)
    a("L_wo_loads:")
    srd(36, 16, 4096 * 1152)
    a(f"v_mul_u32_u24 v6, 1152, v{VR8}\nv_add_u32 v6, v6, v{VC16}")
    a("s_lshl_b32 s6, s4, 8\ns_lshl_b32 s7, s3, 5\ns_add_u32 s6, s6, s7\ns_mul_i32 s6, s6, 1152\ns_lshl_b32 s7, s5, 7\ns_add_u32 s6, s6, s7")
    for t in range(8):
        off = (128 * (t >> 2) + 8 * (t & 3)) * 1152
        a(f"s_add_u32 s7, s6, {off}")
        if not abl_wo: a(f"buffer_load_dwordx4 a[{4*t}:{4*t+3}], v6, s[36:39], s7 offen {wpol}")
    if wodefer: a("s_branch L_B1")
    else: a("s_waitcnt vmcnt(0)\ns_branch L_preB1")
    a("L_wo_post:")
    if tailst: stamp(1)
    a(f"s_mul_i32 s60, s4, {16*1152}\ns_add_u32 s60, s60, {AP:#x}")
    for i in range(4): a(f"s_add_u32 s{64+i}, s60, {4608*i}")
    a("s_lshl_b32 s7, s3, 8")
    for i in range(4): a(f"s_add_u32 s{68+i}, s{64+i}, s7")
    a("s_mov_b32 s82, 0")
    if mpoll:
        for i in range(4): a(f"s_mov_b64 s[{72+2*i}:{73+2*i}], -1")
    a("L_wo_g:")
    for i in range(4):
        if mpoll: a(f"s_cmp_eq_u64 s[{72+2*i}:{73+2*i}], 0\ns_cbranch_scc1 L_wo_sk{i}\ns_mov_b64 exec, s[{72+2*i}:{73+2*i}]")
        a(f"buffer_load_dwordx4 v[{64+4*i}:{67+4*i}], v90, s[40:43], s{68+i} offen sc1")
        a(f"buffer_load_dwordx2 v[{80+2*i}:{81+2*i}], v91, s[40:43], s{64+i} offen sc1")
        if mpoll: a(f"L_wo_sk{i}:")
    if mpoll:
        a("s_mov_b64 exec, -1\ns_waitcnt vmcnt(0)")
        for i in range(4):
            a(f"v_max3_u32 v{24+i}, v{64+4*i}, v{65+4*i}, v{66+4*i}")
        for i in range(4):
            a(f"v_max3_u32 v{24+i}, v{24+i}, v{67+4*i}, v{80+2*i}")
        for i in range(4):
            a(f"v_max_u32 v{24+i}, v{24+i}, v{81+2*i}")
        for i in range(4):
            a(f"v_cmp_eq_u32 s[{72+2*i}:{73+2*i}], -1, v{24+i}")
        a("s_or_b64 s[6:7], s[72:73], s[74:75]\ns_or_b64 vcc, s[76:77], s[78:79]\ns_or_b64 vcc, vcc, s[6:7]\ns_cbranch_scc1 L_wo_retry")
    else:
        a("s_waitcnt vmcnt(0)")
        valid_check(range(64, 88), 26, "L_wo_retry")
    if tailst: stamp(2)
    a("v_max3_f32 v20, v80, v82, v84\nv_max_f32 v20, v20, v86")
    allrow_op("v_max_f32", 20, 21)
    for i in range(4): a(f"v_sub_f32 v{24+i}, v{80+2*i}, v20")
    for i in range(4): a(f"v_exp_f32 v{24+i}, v{24+i}")
    a("v_mul_f32 v22, v24, v81\nv_fmac_f32 v22, v25, v83\nv_fmac_f32 v22, v26, v85\nv_fmac_f32 v22, v27, v87")
    allrow_op("v_add_f32", 22, 21)
    for r in range(4):
        a(f"v_mul_f32 v{28+r}, v24, v{64+r}")
        for i in range(1, 4):
            a(f"v_fmac_f32 v{28+r}, v{24+i}, v{64+4*i+r}")
    treduce(28)
    a("v_rcp_f32 v22, v22")
    a("v_mul_f32 v28, v28, v22\nv_cvt_pk_bf16_f32 v28, v28, v28")
    for t in range(8):
        off = (16 * (t & 3) + 8 * (t >> 2)) * 4
        a(f"ds_bpermute_b32 v{32+t}, v92, v28 offset:{off}")
    zero(range(20, 24))
    a("s_waitcnt lgkmcnt(0)")
    for t in range(8):
        b = 44 + 4 * (t & 1)
        buildB(b, 32 + t)
        mfma(20, f"a[{4*t}:{4*t+3}]", b)
    a(f"s_lshl_b32 s6, s3, 11\nv_add_u32 v8, s6, v{VL16}")
    a(f"ds_write_b128 v8, v[20:23] offset:{SCR}")
    if tailst: stamp(3)
    a("s_waitcnt lgkmcnt(0)\ns_barrier")
    if tailst: stamp(4)
    a("s_cmp_eq_u32 s3, 0\ns_cbranch_scc0 L_exit")
    for w in range(4):
        a(f"ds_read_b32 v{24+2*w}, v{VFOLD} offset:{SCR + 2048*w}\nds_read_b32 v{25+2*w}, v{VFOLD} offset:{SCR + 2048*w + 640}")
    a("s_waitcnt lgkmcnt(0)")
    a("v_add_f32 v24, v24, v25\nv_add_f32 v26, v26, v27\nv_add_f32 v28, v28, v29\nv_add_f32 v30, v30, v31")
    a("v_add_f32 v24, v24, v26\nv_add_f32 v28, v28, v30\nv_add_f32 v24, v24, v28")
    a(f"s_lshl_b32 s6, s5, 4\ns_add_u32 s6, s6, s4\ns_lshl_b32 s6, s6, 8\ns_add_u32 s6, s6, {L2:#x}")
    a(f"buffer_store_dword v24, v{VL4}, s[40:43], s6 offen sc1")
    stamp(7)
    a("s_branch L_exit")
    a("L_wo_retry:")
    spin_guard("L_wo_g", 1)

    a("L_job_fin:")
    a("s_cmp_lt_u32 s4, 9\ns_cbranch_scc0 L_preB1")
    a("s_cmp_eq_u32 s3, 0\ns_cbranch_scc0 L_preB1")
    srd(32, 8, 1152)
    a("v_and_b32 v10, 15, v0\nv_lshlrev_b32 v11, 3, v10\nv_lshrrev_b32 v12, 4, v0\nv_lshlrev_b32 v13, 1, v12\nv_add_u32 v11, v11, v13")
    a("s_lshl_b32 s61, s4, 7")
    a("buffer_load_ushort v15, v11, s[32:35], s61 offen")
    a("v_lshlrev_b32 v16, 9, v0\nv_add_u32 v16, 4, v16")
    a("s_mov_b32 s82, 0")
    a("L_fin_flags:")
    for i in range(4):
        a(f"s_mov_b32 s6, {QP + 32768*i:#x}\nbuffer_load_dword v{20+i}, v16, s[40:43], s6 offen sc1")
    a("s_waitcnt vmcnt(0)")
    tag_check([20, 21, 22, 23], 26, 27, "L_fin_flags_retry")
    a("s_cmp_eq_u32 s4, 0\ns_cbranch_scc0 L_fin_flags_ok")
    a(f"v_mov_b32 v20, s91\ns_mov_b32 s6, {GOFF:#x}\ns_mov_b64 exec, 1")
    a(f"buffer_store_dword v20, v{VZ}, s[40:43], s6 offen sc1\ns_mov_b64 exec, -1")
    a("L_fin_flags_ok:")
    a("v_mul_u32_u24 v12, 2304, v12\nv_lshlrev_b32 v13, 4, v10\nv_add_u32 v12, v12, v13")
    a(f"s_lshl_b32 s62, s4, 8\ns_add_u32 s62, s62, {FP:#x}")
    a(f"v_mul_u32_u24 v16, 2304, v0\nv_min_u32 v18, 7, v0\nv_mul_u32_u24 v18, 2304, v18\ns_add_u32 s63, s62, {64*2304}")
    a("s_mov_b32 s82, 0")
    if abl_ffn: a("v_mov_b32 v17, 0\nv_lshlrev_b32 v15, 16, v15\ns_branch L_preB1")
    a("L_fin_p:")
    a("buffer_load_dword v20, v16, s[40:43], s62 offen sc1\nbuffer_load_dword v21, v18, s[40:43], s63 offen sc1\ns_waitcnt vmcnt(0)")
    a("v_max_u32 v20, v20, v21\nv_cmp_eq_u32 vcc, -1, v20\ns_cmp_lg_u64 vcc, 0\ns_cbranch_scc1 L_fin_p_retry")
    a("s_mov_b32 s82, 0")
    a("L_fin_f:")
    a("s_mov_b32 s6, s62")
    for i in range(18):
        a(f"buffer_load_dwordx4 v[{48+4*i}:{51+4*i}], v12, s[40:43], s6 offen sc1")
        if i < 17: a("s_add_u32 s6, s6, 9216")
    a("s_waitcnt vmcnt(0)")
    valid_check(range(48, 120), 26, "L_fin_f_retry")
    for i in range(1, 18):
        for r in range(4):
            a(f"v_add_f32 v{48+r}, v{48+r}, v{48+4*i+r}")
    treduce(48)
    rbf(17, 48)
    a("v_lshlrev_b32 v15, 16, v15")
    a("s_branch L_preB1")
    a("L_fin_post:")
    if tailst: stamp(1)
    a(f"s_lshl_b32 s62, s4, 12\ns_add_u32 s62, s62, {L2:#x}")
    a("s_mov_b32 s82, 0")
    a("L_fin_g:")
    for i in range(4):
        a(f"buffer_load_dwordx4 v[{48+4*i}:{51+4*i}], v{VL16}, s[40:43], s62 offen offset:{1024*i} sc1")
    a("s_waitcnt vmcnt(0)")
    valid_check(range(48, 64), 26, "L_fin_g_retry")
    if tailst: stamp(2)
    for r in range(4):
        a(f"v_add_f32 v{48+r}, v{48+r}, v{52+r}\nv_add_f32 v{56+r}, v{56+r}, v{60+r}\nv_add_f32 v{48+r}, v{48+r}, v{56+r}")
    treduce(48)
    rbf(48, 48)
    a("v_add_f32 v48, v15, v48")
    rbf(48, 48)
    a("v_add_f32 v48, v48, v17\nv_cvt_pk_bf16_f32 v48, v48, v48")
    a(f"buffer_store_short v48, v93, s[48:51], s61 offen {outpol}")
    stamp(7)
    a("s_branch L_exit")
    a("L_fin_flags_retry:")
    spin_guard("L_fin_flags", 32)
    a("L_fin_p_retry:")
    spin_guard("L_fin_p", 64)
    a("L_fin_f_retry:")
    spin_guard("L_fin_f", 16)
    a("L_fin_g_retry:")
    spin_guard("L_fin_g", 1)

    a("L_job_ffn:")
    srd(32, 20, 576 * 9216)
    srd(36, 22, 576 * 9216)
    srd(48, 24, 4608 * 1152)
    a("s_sub_u32 s58, s3, 1")
    a(f"v_mul_u32_u24 v6, 9216, v{VR8}\nv_add_u32 v6, v6, v{VC16}")
    a(f"v_mul_u32_u24 v7, 1152, v{VR8}\nv_add_u32 v7, v7, v{VC16}")
    a(f"s_mul_i32 s60, s58, 192\ns_lshl_b32 s6, s60, 2\nv_lshlrev_b32 v10, 2, v{VR8}\nv_add_u32 v10, s6, v10")
    a("s_mul_i32 s62, s60, 9216\ns_lshl_b32 s6, s57, 7\ns_add_u32 s62, s62, s6")
    a("s_mul_i32 s63, s57, 73728\ns_mul_i32 s6, s58, 384\ns_add_u32 s63, s63, s6")
    if ffn_contig:
        a(f"v_mov_b32 v6, v{VL16}\nv_mov_b32 v7, v{VL16}")
        a("s_mul_i32 s62, s57, 73728\ns_mul_i32 s6, s58, 24576\ns_add_u32 s62, s62, s6\ns_mov_b32 s63, s62")
    loads = []
    for t in range(24): loads += [("g", t), ("u", t)]
    for t in range(8): loads += [("d", t, 0), ("d", t, 1), ("d", t, 2)]
    R = W
    def issue(i):
        ld = loads[i]; r = 4 * (i % R)
        if ld[0] == "g":
            a(f"buffer_load_dwordx4 a[{r}:{r+3}], v6, s[32:35], s62 offen {wpol}")
        elif ld[0] == "u":
            a(f"buffer_load_dwordx4 a[{r}:{r+3}], v6, s[36:39], s62 offen {wpol}\ns_add_u32 s62, s62, {1024 if ffn_contig else 8*9216}")
        else:
            a(f"buffer_load_dwordx4 a[{r}:{r+3}], v7, s[48:51], s63 offen offset:{(1024 if ffn_contig else 128)*ld[2]} {wpol}")
            if ld[2] == 2: a(f"s_add_u32 s63, s63, {3072 if ffn_contig else 8*1152}")
    for i in range(W): issue(i)
    zero(range(20, 40))
    for i, ld in enumerate(loads):
        if ld[0] == "g":
            t = ld[1]
            if t % 4 == 0:
                for u in range(4): a(f"ds_read_b32 v{48+u}, v10 offset:{XS + 32*(t+u)}")
                a("s_waitcnt lgkmcnt(0)")
            buildB(44, 48 + (t % 4))
        if ld[0] == "d" and ld[1] == 0 and ld[2] == 0:
            a(f"s_lshl_b32 s6, s58, 11\nv_add_u32 v8, s6, v{VL16}")
            a(f"ds_write_b128 v8, v[20:23] offset:{SCR}\nds_write_b128 v8, v[24:27] offset:{SCR+1024}")
            a("v_mov_b32 v11, 1\ns_waitcnt lgkmcnt(0)")
            a(f"s_mov_b64 exec, 1\nds_add_u32 v{VZ}, v11 offset:{FLG+8}\ns_mov_b64 exec, -1")
            spin_lds(8, 3, 26, VZ)
            for w in range(3):
                for m in range(2):
                    a(f"ds_read_b32 v{48+4*w+2*m}, v{VFOLD} offset:{SCR+2048*w+1024*m}\nds_read_b32 v{49+4*w+2*m}, v{VFOLD} offset:{SCR+2048*w+1024*m+640}")
            a("s_waitcnt lgkmcnt(0)")
            a("v_add_f32 v48, v48, v49\nv_add_f32 v52, v52, v53\nv_add_f32 v56, v56, v57\nv_add_f32 v48, v48, v52\nv_add_f32 v48, v48, v56")
            a("v_add_f32 v50, v50, v51\nv_add_f32 v54, v54, v55\nv_add_f32 v58, v58, v59\nv_add_f32 v50, v50, v54\nv_add_f32 v50, v50, v58")
            rbf(48, 48); rbf(50, 50)
            a("v_mul_f32 v52, v48, v48\nv_mul_f32 v52, v52, v48\nv_mul_f32 v52, 0x3d372713, v52\nv_add_f32 v52, v48, v52")
            a("v_mul_f32 v52, 0x3f4c422a, v52\nv_mul_f32 v52, 0xc038aa3b, v52\nv_exp_f32 v52, v52")
            a("v_add_f32 v52, 1.0, v52\nv_rcp_f32 v52, v52")
            a("v_mul_f32 v52, v48, v52")
            rbf(52, 52)
            a("v_mul_f32 v52, v52, v50\nv_cvt_pk_bf16_f32 v52, v52, v52")
            a(f"s_lshl_b32 s6, s58, 8\nv_add_u32 v8, s6, v{VL4}")
            a(f"ds_write_b32 v8, v52 offset:{HS}")
            a(f"v_lshlrev_b32 v8, 2, v{VR8}\nv_add_u32 v8, s6, v8")
            for t in range(8): a(f"ds_read_b32 v{64+t}, v8 offset:{HS + 32*t}")
            a("s_waitcnt lgkmcnt(0)")
        if ld[0] == "d" and ld[2] == 0:
            buildB(44, 64 + ld[1])
        a(f"s_waitcnt vmcnt({min(W, len(loads) - i) - 1})")
        r = 4 * (i % R)
        acc = 20 if ld[0] == "g" else 24 if ld[0] == "u" else 28 + 4 * ld[2]
        mfma(acc, f"a[{r}:{r+3}]", 44)
        if i + W < len(loads): issue(i + W)
    a(f"s_mul_i32 s6, s58, 3072\nv_add_u32 v8, s6, v{VL16}\nv_add_u32 v9, s6, v{VFOLD}")
    for u in range(3):
        a(f"ds_write_b128 v8, v[{28+4*u}:{31+4*u}] offset:{SCR2 + 1024*u}")
    for u in range(3):
        a(f"ds_read_b32 v{48+2*u}, v9 offset:{SCR2 + 1024*u}\nds_read_b32 v{49+2*u}, v9 offset:{SCR2 + 1024*u + 640}")
    a("s_waitcnt lgkmcnt(0)")
    a(f"s_mul_i32 s6, s57, 2304\ns_mul_i32 s7, s58, 768\ns_add_u32 s6, s6, s7\ns_add_u32 s6, s6, {FP:#x}")
    for u in range(3):
        a(f"v_add_f32 v{48+2*u}, v{48+2*u}, v{49+2*u}")
        a(f"buffer_store_dword v{48+2*u}, v{VL4}, s[40:43], s6 offen offset:{256*u} sc1")
    a("s_branch L_preB1")

    a("L_stream:")
    a("s_lshl_b32 s6, s4, 24")
    a("s_add_u32 s32, s10, s6\ns_addc_u32 s33, s11, 0\ns_mov_b32 s34, 0x1000000\ns_mov_b32 s35, 0x20000")
    a("s_add_u32 s36, s12, s6\ns_addc_u32 s37, s13, 0\ns_mov_b32 s38, 0x1000000\ns_mov_b32 s39, 0x20000")
    a("s_sub_u32 s58, s3, 4")
    a("s_barrier")
    table_lookup()
    a("s_lshl_b32 s61, s62, 14")
    a("s_lshl_b32 s60, s58, 12\ns_add_u32 s60, s60, s61")
    a("s_lshl_b32 s67, s67, 2")
    a("v_lshlrev_b32 v1, 4, v0")
    STR = 16384
    def kload(s, so):
        for j in range(4):
            r = 64 + 16 * s + 4 * j
            a(f"buffer_load_dwordx4 v[{r}:{r+3}], v1, s[32:35], {so} offen offset:{1024*j} {kvpol}")
    def vload(s, so):
        for j in range(4):
            r = 16 * s + 4 * j
            a(f"buffer_load_dwordx4 a[{r}:{r+3}], v1, s[36:39], {so} offen offset:{1024*j} {kvpol}")
    if not vlag:
        for s in range(NS):
            if pace and s: a(f"s_waitcnt vmcnt({pace})")
            kload(s, "s60")
            if pace and s: a(f"s_waitcnt vmcnt({pace})")
            vload(s, "s60")
            a(f"s_mov_b32 s{70+s}, s60\ns_add_u32 s60, s60, {STR}")
    else:
        for s in range(NS): a(f"s_add_u32 s{70+s}, s60, {STR*s}")
        for s in range(NS):
            kload(s, f"s{70+s}")
            if s: vload(s - 1, f"s{69+s}")
        vload(NS - 1, f"s{69+NS}")
    stamp(1)
    a("v_mov_b32 v19, 0")
    spin_lds(0, 1, 62, 19)
    stamp(2)
    a("v_and_b32 v62, 15, v0\nv_lshlrev_b32 v62, 4, v62")
    a(f"ds_read_b128 v[6:9], v62 offset:{QL}\nds_read_b128 v[10:13], v62 offset:{QL+256}")
    a("v_mov_b32 v14, 0xf149f2ca\nv_mov_b32 v16, 0xf149f2ca\nv_mov_b32 v17, 0")
    zero(range(20, 24))
    a("s_mov_b32 s64, 0x1000000")
    a(f"s_mov_b32 s66, {L}\ns_mov_b32 s65, 0")
    a("s_waitcnt lgkmcnt(0)")
    if prog:
        a("s_lshl_b32 s80, s58, 7")
        a(f"v_lshlrev_b32 v62, 2, v0\nv_add_u32 v62, s80, v62\nv_mov_b32 v63, 0\ns_mov_b64 exec, 0xffffffff\nds_write_b32 v62, v63 offset:{PRG}\ns_mov_b64 exec, -1\ns_waitcnt lgkmcnt(0)")
    a("L_loop:")
    S0, S1, Q0, Q1 = 24, 28, 6, 10
    for s in range(NS):
        kb = 64 + 16 * s; vb = 16 * s; rs = (s + L) % NS
        a(f"s_cmp_ge_u32 s{70+s}, s64\ns_cbranch_scc1 L_loop_end")
        if prog and s == 0:
            a("s_memrealtime s[84:85]\ns_waitcnt lgkmcnt(0)\nv_mov_b32 v62, s80\nv_mov_b32 v63, s84")
            a(f"ds_write_b32 v62, v63 offset:{PRG}\ns_add_u32 s80, s80, 4")
        a(f"s_cmp_ge_u32 s65, s64\ns_cbranch_scc1 L_notk_{s}")
        if s < NS - L: a(f"s_cmp_lt_u32 s66, {NS}\ns_cbranch_scc1 L_notk_{s}")
        a(f"v_mov_b32 v62, 0\nv_mov_b32 v63, 1\ns_mov_b64 exec, 1\nds_add_rtn_u32 v63, v62, v63 offset:{TK}\ns_mov_b64 exec, -1")
        a(f"L_notk_{s}:")
        a(f"s_waitcnt vmcnt({8*L-4})")
        for e in range(4):
            for j in range(4):
                for (S, Q) in ((S0, Q0), (S1, Q1)):
                    if e == 0: a(f"v_dot2_f32_bf16 v{S+j}, v{kb+4*j}, v{Q}, 0")
                    else: a(f"v_dot2c_f32_bf16 v{S+j}, v{kb+4*j+e}, v{Q+e}")
        if s < NS - L: a(f"s_cmp_lt_u32 s66, {NS}\ns_cbranch_scc1 L_skipK_{s}")
        a(f"s_cmp_ge_u32 s65, s64\ns_cbranch_scc1 L_back_{s}")
        a("s_waitcnt lgkmcnt(0)\nv_readfirstlane_b32 s6, v63")
        a(f"s_cmp_lt_u32 s6, s67\ns_cbranch_scc0 L_dyn_{s}")
        a("s_lshl_b32 s65, s6, 12\ns_add_u32 s65, s65, s61")
        a(f"L_back_{s}:")
        a(f"s_mov_b32 s{70+rs}, s65")
        kload(rs, "s65")
        if s < NS - L: a(f"L_skipK_{s}:")
        if vlag:
            ps = (s + L - 1) % NS
            if s < NS - L + 1: a(f"s_cmp_lt_u32 s66, {NS+1}\ns_cbranch_scc1 L_skipV_{s}")
            vload(ps, f"s{70+ps}")
            if s < NS - L + 1: a(f"L_skipV_{s}:")
        for j in range(4): a(f"v_add_f32_dpp v{S0+j}, v{S0+j}, v{S0+j} row_ror:8 row_mask:0xf bank_mask:0x3")
        for j in range(4): a(f"v_add_f32_dpp v{S0+j}, v{S1+j}, v{S1+j} row_ror:8 row_mask:0xf bank_mask:0xc")
        for m in ("row_half_mirror", "quad_perm:[1,0,3,2]", "quad_perm:[2,3,0,1]"):
            for j in range(4): a(f"v_add_f32_dpp v{S0+j}, v{S0+j}, v{S0+j} {m} row_mask:0xf bank_mask:0xf")
        a("v_cvt_pk_bf16_f32 v52, v24, v25\nv_cvt_pk_bf16_f32 v53, v26, v27")
        a("v_lshlrev_b32 v48, 16, v52\nv_and_b32 v49, s90, v52\nv_lshlrev_b32 v50, 16, v53\nv_and_b32 v51, s90, v53")
        for j in range(4): a(f"v_mul_f32 v{48+j}, s89, v{48+j}")
        a("v_cvt_pk_bf16_f32 v52, v48, v49\nv_cvt_pk_bf16_f32 v53, v50, v51")
        a("v_lshlrev_b32 v54, 16, v52\nv_and_b32 v55, s90, v52\nv_lshlrev_b32 v56, 16, v53\nv_and_b32 v57, s90, v53")
        a("v_max3_f32 v19, v54, v55, v56\nv_max3_f32 v19, v19, v57, v14")
        a("v_mov_b32 v62, v19\nv_permlane16_swap_b32 v19, v62\nv_max_f32 v19, v19, v62")
        a("v_mov_b32 v62, v19\nv_permlane32_swap_b32 v19, v62\nv_max_f32 v14, v19, v62")
        a("v_mul_f32 v15, s88, v14\nv_sub_f32 v18, v16, v15")
        for j in range(4): a(f"v_fma_f32 v{54+j}, v{54+j}, s88, -v15")
        a("v_exp_f32 v18, v18")
        for j in range(4): a(f"v_exp_f32 v{54+j}, v{54+j}")
        a("v_mov_b32 v16, v15")
        for j in range(4): a(f"v_cvt_pk_bf16_f32 v{58+j}, v{54+j}, v{54+j}")
        a("v_add_f32 v19, v54, v55\nv_add_f32 v62, v56, v57")
        for r in range(4): a(f"v_mul_f32 v{20+r}, v{20+r}, v18")
        a("v_add_f32 v19, v19, v62")
        for j in range(4): buildB(32 + 4 * j, 58 + j)
        a("v_fma_f32 v17, v17, v18, v19")
        a(f"s_waitcnt vmcnt({8*(L-1) if vlag else 8*L-4})")
        for j in range(4): mfma(20, f"a[{vb+4*j}:{vb+4*j+3}]", 32 + 4 * j)
        if not vlag:
            if s < NS - L: a(f"s_cmp_lt_u32 s66, {NS}\ns_cbranch_scc1 L_skipV_{s}")
            vload(rs, "s65")
            if s < NS - L: a(f"L_skipV_{s}:")
        a("s_add_u32 s66, s66, 1")
    a("s_branch L_loop")
    for s in range(NS):
        a(f"L_dyn_{s}:")
        a("s_sub_u32 s7, s6, s67\ns_and_b32 s7, s7, -4\nv_mov_b32 v62, s7\ns_and_b32 s6, s6, 3\ns_lshl_b32 s59, s6, 12\ns_mov_b32 s82, 0")
        a(f"L_dynsp_{s}:")
        a(f"ds_read_b32 v63, v62 offset:{DQ}\ns_waitcnt lgkmcnt(0)\nv_readfirstlane_b32 s65, v63")
        a(f"s_cmp_eq_u32 s65, -1\ns_cbranch_scc1 L_dynw_{s}")
        a(f"s_add_u32 s65, s65, s59\ns_branch L_back_{s}")
        a(f"L_dynw_{s}:")
        a(f"s_sleep 1\ns_add_u32 s82, s82, 1\ns_cmp_lt_u32 s82, {SPIN_LIMIT:#x}\ns_cbranch_scc1 L_dynsp_{s}\ns_branch L_exit")
    a("L_loop_end:")
    stamp(3)
    if prog:
        a(f"s_lshl_b32 s6, s58, 7\nv_lshlrev_b32 v62, 2, v0\nv_add_u32 v63, s6, v62\nds_read_b32 v63, v63 offset:{PRG}\ns_waitcnt lgkmcnt(0)")
        a(f"s_lshl_b32 s6, s2, 2\ns_add_u32 s6, s6, s58\ns_lshl_b32 s6, s6, 7\ns_add_u32 s6, s6, {DBGO:#x}\ns_mov_b64 exec, 0xffffffff")
        a("buffer_store_dword v63, v62, s[40:43], s6 offen\ns_mov_b64 exec, -1")
    allrow_op("v_add_f32", 17, 62)
    a(f"s_lshl_b32 s6, s58, 10\nv_add_u32 v62, s6, v1")
    a(f"ds_write_b128 v62, v[20:23] offset:{ACC}")
    a("v_bfe_u32 v63, v0, 3, 1\nv_lshlrev_b32 v63, 3, v63\ns_lshl_b32 s6, s58, 4\nv_add_u32 v62, s6, v63")
    a(f"s_mov_b64 exec, 0x101\nds_write_b64 v62, v[16:17] offset:{MLL}\ns_mov_b64 exec, -1")
    a("s_waitcnt lgkmcnt(0)\ns_barrier")
    a("s_cmp_eq_u32 s58, 0\ns_cbranch_scc0 L_exit")
    stamp(4)
    for w in range(4):
        a(f"ds_read_b128 v[{32+4*w}:{35+4*w}], v1 offset:{ACC + 1024*w}")
        a(f"ds_read_b64 v[{48+2*w}:{49+2*w}], v63 offset:{MLL + 16*w}")
    a("s_waitcnt lgkmcnt(0)")
    a("v_max3_f32 v16, v48, v50, v52\nv_max_f32 v16, v16, v54")
    for w in range(4): a(f"v_sub_f32 v{24+w}, v{48+2*w}, v16")
    for w in range(4): a(f"v_exp_f32 v{24+w}, v{24+w}")
    a("v_mul_f32 v17, v24, v49\nv_fmac_f32 v17, v25, v51\nv_fmac_f32 v17, v26, v53\nv_fmac_f32 v17, v27, v55")
    for r in range(4):
        a(f"v_mul_f32 v{20+r}, v24, v{32+r}")
        for w in range(1, 4): a(f"v_fmac_f32 v{20+r}, v{24+w}, v{32+4*w+r}")
    a(f"s_mul_i32 s6, s56, 1152\ns_add_u32 s6, s6, {AP:#x}")
    a("buffer_store_dwordx4 v[20:23], v1, s[40:43], s6 offen sc1")
    a("s_mov_b64 exec, 0x101\nbuffer_store_dwordx2 v[16:17], v63, s[40:43], s6 offen offset:1024 sc1\ns_mov_b64 exec, -1")
    stamp(5)

    a("L_exit:")
    if stamps:
        a("s_memrealtime s[84:85]\ns_waitcnt lgkmcnt(0) vmcnt(0)")
        a("s_getreg_b32 s6, hwreg(HW_REG_XCC_ID)")
        a(f"s_lshl_b32 s7, s2, 3\ns_add_u32 s7, s7, s3\ns_mul_i32 s7, s7, 48\ns_add_u32 s7, s7, {STAMP:#x}")
        for k in range(8): a(f"v_mov_b32 v{100+k}, s{92+k}")
        a("v_mov_b32 v108, s84\nv_mov_b32 v109, s6\nv_mov_b32 v110, 0\nv_mov_b32 v111, 0\nv_mov_b32 v99, 0")
        a("s_mov_b64 exec, 1")
        a("buffer_store_dwordx4 v[100:103], v99, s[40:43], s7 offen\nbuffer_store_dwordx4 v[104:107], v99, s[40:43], s7 offen offset:16\nbuffer_store_dwordx4 v[108:111], v99, s[40:43], s7 offen offset:32")
    a("L_end:")
    a("s_endpgm")
    hdr = header(256, 512, LDS_SIZE, comments=open("parallel_sum__gqa_block_cached__glu_gated_geglu__decode.s.ref").read().split("; Override")[0].strip().split("\n"))
    accum = max(128, 64 + 16 * NS)
    assert accum + max(16 * NS, 72) <= 256
    return a.text(hdr, footer(256, 102, accum), verbose=True)

if __name__ == "__main__":
    kw = {}
    for arg in sys.argv[2:]:
        k, v = arg.split("="); kw[k] = eval(v)
    open(sys.argv[1], "w").write(gen(**kw))
```

```python
import sys
from asmlib import *

QP = 0x0
AP = 0x20000
L2 = 0x68000
FP = 0x71000
GOFF = 0x99800
CNT = 0x9A000
WS_SIZE = 0xC0000
STAMP = 0x100000
DBGO = 0x120000
XS = 0x0; QL = 0x900; FLG = 0xB00; MLL = 0xB40; ACC = 0xC00; SCR = 0x2000; HS = 0x4000; SCR2 = 0x4400; DQ = 0x6800; TK = 0x6C00; PRG = 0x6C40; LDS_SIZE = 0x6E40
SPIN_LIMIT = 0x100000
VL4, VL16, VFOLD, VC16, VR8, VZ = 120, 121, 122, 123, 124, 125

def rounds_table(nf_rounds=6.9):
    tabs = {}
    for grp, nf in (("lo", 5), ("hi", 4)):
        extra = [1.0 if c < 9 else (0.5 if c == 9 else (nf_rounds if (10 <= c < 10 + nf) else 0.0)) for c in range(16)]
        avg = (1024 + sum(extra)) / 16
        n = [int(avg - e) for e in extra]
        rem = 1024 - sum(n)
        order = sorted(range(16), key=lambda c: -((avg - extra[c]) - n[c]))
        for c in order[:rem]: n[c] += 1
        assert sum(n) == 1024
        tabs[grp] = n
    return tabs

def gen(NS=6, L=3, P=160, LA=3, stamps=False, pace=None, kvpol="nt", wpol="nt", W=12, dbg=False, nf_rounds=6.9, abl_ffn=False, abl_wo=False, ffn_contig=False, prog=False, outpol='', tailst=False, hmix=0, hxor=0, mpoll=True, wodefer=True, cstride=1024, coff=0, fperm=3, vlag=False, ackwait=False, qsleep=1, dstamp=False):
    a = Asm()
    def stamp(k):
        if stamps:
            a(f"s_memrealtime s[84:85]\ns_waitcnt lgkmcnt(0)\ns_mov_b32 s{92+k}, s84")
    def dst(idx, neg=False):
        if not dstamp: return
        a("s_memrealtime s[84:85]\ns_waitcnt lgkmcnt(0)")
        if neg: a("s_not_b32 s84, s84")
        a("s_mov_b32 s44, s28\ns_mov_b32 s45, s29\ns_mov_b32 s46, 256\ns_mov_b32 s47, 0x20000")
        a(f"s_mov_b64 s[86:87], exec\ns_mov_b64 exec, 1\nv_mov_b32 v18, s84\nv_mov_b32 v19, {4*idx}")
        a("buffer_atomic_umax v18, v19, s[44:47], 0 offen sc1\ns_mov_b64 exec, s[86:87]")
    def srd(base, plo, size):
        a(f"s_mov_b32 s{base}, s{plo}\ns_mov_b32 s{base+1}, s{plo+1}\ns_mov_b32 s{base+2}, {size:#x}\ns_mov_b32 s{base+3}, 0x20000")
    uid = [0]
    def lab(n):
        uid[0] += 1; return f"L_{n}_{uid[0]}"
    def spin_lds(flagoff, want, vtmp, vzero, sleep=1):
        L = lab("sp"); D = lab("spd")
        a("s_mov_b32 s82, 0")
        a(f"{L}:")
        a(f"ds_read_b32 v{vtmp}, v{vzero} offset:{FLG+flagoff}")
        a("s_waitcnt lgkmcnt(0)")
        a(f"v_readfirstlane_b32 s6, v{vtmp}")
        a(f"s_cmp_eq_u32 s6, {want}\ns_cbranch_scc1 {D}")
        a(f"s_sleep {sleep}\ns_add_u32 s82, s82, 1\ns_cmp_lt_u32 s82, {SPIN_LIMIT:#x}\ns_cbranch_scc1 {L}\ns_branch L_exit")
        a(f"{D}:")
    def allrow_op(op, v, t):
        a(f"v_mov_b32 v{t}, v{v}\nv_permlane16_swap_b32 v{v}, v{t}\n{op} v{v}, v{v}, v{t}")
        a(f"v_mov_b32 v{t}, v{v}\nv_permlane32_swap_b32 v{v}, v{t}\n{op} v{v}, v{v}, v{t}")
    def wave_sum(v, t):
        for r in (8, 4, 2, 1):
            a(f"v_add_f32_dpp v{v}, v{v}, v{v} row_ror:{r} row_mask:0xf bank_mask:0xf")
        allrow_op("v_add_f32", v, t)
    def rbf(dst, src):
        a(f"v_cvt_pk_bf16_f32 v{dst}, v{src}, v{src}\nv_and_b32 v{dst}, s90, v{dst}")
    def treduce(x):
        a(f"v_permlane16_swap_b32 v{x}, v{x+1}\nv_permlane16_swap_b32 v{x+2}, v{x+3}")
        a(f"v_add_f32 v{x}, v{x}, v{x+1}\nv_add_f32 v{x+2}, v{x+2}, v{x+3}")
        a(f"v_permlane32_swap_b32 v{x}, v{x+2}\nv_add_f32 v{x}, v{x}, v{x+2}")
    def buildB(dst, src):
        for q in range(4): a(f"v_and_b32 v{dst+q}, v{src}, v{2+q}")
    def valid_check(regs, t, retry_label):
        r = list(regs)
        a(f"v_max3_u32 v{t}, v{r[0]}, v{r[1]}, v{r[2]}")
        r = r[3:]
        while len(r) >= 2:
            a(f"v_max3_u32 v{t}, v{t}, v{r[0]}, v{r[1]}"); r = r[2:]
        if r: a(f"v_max_u32 v{t}, v{t}, v{r[0]}")
        a(f"v_cmp_eq_u32 vcc, -1, v{t}\ns_cmp_lg_u64 vcc, 0\ns_cbranch_scc1 {retry_label}")
    def tag_check(regs, t0, t1, retry_label):
        r = list(regs)
        a(f"v_min3_u32 v{t0}, v{r[0]}, v{r[1]}, v{r[2]}\nv_max3_u32 v{t1}, v{r[0]}, v{r[1]}, v{r[2]}")
        r = r[3:]
        while len(r) >= 2:
            a(f"v_min3_u32 v{t0}, v{t0}, v{r[0]}, v{r[1]}\nv_max3_u32 v{t1}, v{t1}, v{r[0]}, v{r[1]}"); r = r[2:]
        if r: a(f"v_min_u32 v{t0}, v{t0}, v{r[0]}\nv_max_u32 v{t1}, v{t1}, v{r[0]}")
        a(f"v_cmp_ne_u32 vcc, s91, v{t0}\ns_cmp_lg_u64 vcc, 0\ns_cbranch_scc1 {retry_label}")
        a(f"v_cmp_ne_u32 vcc, s91, v{t1}\ns_cmp_lg_u64 vcc, 0\ns_cbranch_scc1 {retry_label}")
    def spin_guard(loop_label, sleep):
        a(f"s_sleep {sleep}\ns_add_u32 s82, s82, 1\ns_cmp_lt_u32 s82, {SPIN_LIMIT:#x}\ns_cbranch_scc1 {loop_label}\ns_branch L_exit")
    def mfma(acc, A, B):
        a(f"v_mfma_f32_16x16x32_bf16 v[{acc}:{acc+3}], {A}, v[{B}:{B+3}], v[{acc}:{acc+3}]")
    def zero(regs):
        for r in regs: a(f"v_mov_b32 v{r}, 0")

    tabs = rounds_table(nf_rounds)
    def table_lookup():
        ent = []
        for grp in ("lo", "hi"):
            st = 0
            for n in tabs[grp]:
                n -= P // 16
                assert 32 <= n < 64 + 32
                ent.append(st | ((n - 40) << 11)); st += n
            assert st == 1024 - P
        for i in range(16): a(f"s_mov_b32 s{64+i}, {ent[2*i] | (ent[2*i+1] << 16):#x}")
        a("s_lshr_b32 s6, s4, 3\ns_lshl_b32 s6, s6, 4\ns_add_u32 s6, s6, s5")
        a("s_lshr_b32 s7, s6, 1\ns_mov_b32 m0, s7\ns_and_b32 s6, s6, 1\ns_lshl_b32 s6, s6, 4\ns_movrels_b32 s7, s64")
        a("s_lshr_b32 s7, s7, s6\ns_and_b32 s62, s7, 0x7ff\ns_bfe_u32 s67, s7, 0x5000b\ns_add_u32 s67, s67, 40")

    a("s_cmp_ge_u32 s2, 256\ns_cbranch_scc1 L_end")
    a("s_load_dwordx16 s[8:23], s[0:1], 0\ns_load_dwordx8 s[24:31], s[0:1], 64")
    if stamps: a("s_memrealtime s[84:85]")
    a("v_lshrrev_b32 v1, 6, v0\nv_and_b32 v0, 63, v0")
    a("s_lshr_b32 s4, s2, 4\ns_and_b32 s5, s2, 15")
    if hmix: a(f"s_and_b32 s6, s2, 7\ns_mul_i32 s6, s6, {hmix}\ns_add_u32 s4, s4, s6\ns_and_b32 s4, s4, 15")
    if hxor: a(f"s_xor_b32 s4, s4, {hxor}")
    a("v_readfirstlane_b32 s3, v1")
    a("s_mov_b32 s88, 0x3fb8aa3b\ns_mov_b32 s89, 0x3db504f3\ns_mov_b32 s90, 0xffff0000")
    a("v_and_b32 v6, 1, v0\nv_lshlrev_b32 v6, 4, v6\nv_mov_b32 v7, 0xffff\nv_lshlrev_b32 v7, v6, v7\nv_bfe_u32 v8, v0, 1, 2")
    for q in range(4):
        a(f"v_cmp_eq_u32 vcc, {q}, v8\nv_cndmask_b32 v{2+q}, 0, v7, vcc")
    a("s_lshl_b32 s56, s4, 4\ns_add_u32 s56, s56, s5")
    a("s_waitcnt lgkmcnt(0)")
    if stamps:
        a("s_mov_b32 s92, s84")
        for k in range(1, 8): a(f"s_mov_b32 s{92+k}, 0")
    srd(40, 30, DBGO + 0x40000 if (stamps or dbg) else WS_SIZE)
    if dstamp:
        a("s_cmp_eq_u32 s3, 2\ns_cbranch_scc0 L_nod0")
        dst(0, neg=True); dst(1)
        a("L_nod0:")
    a("s_cmp_ge_u32 s3, 4\ns_cbranch_scc1 L_stream")

    a(f"v_mov_b32 v{VZ}, 0\nv_lshlrev_b32 v{VL4}, 2, v0\nv_lshlrev_b32 v{VL16}, 4, v0")
    a(f"v_lshrrev_b32 v{VR8}, 3, v0\nv_and_b32 v{VC16}, 7, v0\nv_lshlrev_b32 v{VC16}, 4, v{VC16}")
    a(f"v_lshrrev_b32 v6, 5, v0\nv_lshlrev_b32 v6, 8, v6\nv_and_b32 v7, 3, v{VR8}\nv_lshlrev_b32 v7, 2, v7\nv_add3_u32 v{VFOLD}, v6, v7, v{VC16}")
    a(f"s_sub_u32 s57, s5, 10\ns_and_b32 s6, s57, 3\ns_mul_i32 s6, s6, {fperm}\ns_add_u32 s6, s6, s4\ns_and_b32 s6, s6, 15\ns_lshl_b32 s57, s57, 4\ns_add_u32 s57, s57, s6")
    a("s_cmp_eq_u32 s3, 0\ns_cbranch_scc1 L_h0")
    a("s_cmp_eq_u32 s3, 1\ns_cbranch_scc1 L_h1")
    a("s_barrier")
    a("s_branch L_hwait")

    a("L_h1:")
    a("v_mov_b32 v10, -1\nv_mov_b32 v11, -1\nv_mov_b32 v12, -1\nv_mov_b32 v13, -1")
    a(f"s_mul_i32 s6, s56, 1152\ns_add_u32 s6, s6, {AP:#x}")
    a(f"buffer_store_dwordx4 v[10:13], v{VL16}, s[40:43], s6 offen sc1")
    a(f"s_mov_b64 exec, 0xf\nbuffer_store_dword v10, v{VL4}, s[40:43], s6 offen offset:1024 sc1\ns_mov_b64 exec, -1")
    a("s_cmp_lt_u32 s5, 9\ns_cbranch_scc0 L_h1_nowo")
    a(f"s_lshl_b32 s6, s5, 4\ns_add_u32 s6, s6, s4\ns_lshl_b32 s6, s6, 8\ns_add_u32 s6, s6, {L2:#x}")
    a(f"buffer_store_dword v10, v{VL4}, s[40:43], s6 offen sc1")
    a("L_h1_nowo:")
    a("s_cmp_lt_u32 s57, 72\ns_cbranch_scc0 L_h1_noffn")
    a(f"s_mul_i32 s6, s57, 2304\ns_add_u32 s6, s6, {FP:#x}")
    a(f"buffer_store_dwordx4 v[10:13], v{VL16}, s[40:43], s6 offen sc1")
    a(f"buffer_store_dwordx4 v[10:13], v{VL16}, s[40:43], s6 offen offset:1024 sc1")
    a(f"buffer_store_dword v10, v{VL4}, s[40:43], s6 offen offset:2048 sc1")
    a("L_h1_noffn:")
    a("s_cmp_eq_u32 s5, 0\ns_cbranch_scc0 L_h1_nocnt")
    a(f"s_mul_i32 s6, s4, {cstride}\ns_add_u32 s6, s6, {CNT+coff:#x}\nv_mov_b32 v14, 0\ns_mov_b64 exec, 1")
    a(f"buffer_store_dword v14, v{VZ}, s[40:43], s6 offen sc1\ns_mov_b64 exec, -1")
    a("L_h1_nocnt:")
    a("s_barrier")
    a("s_waitcnt vmcnt(0)")
    a("v_mov_b32 v10, 1")
    a(f"ds_write_b32 v{VZ}, v10 offset:{FLG+4}")
    stamp(1)
    a("s_branch L_hwait")

    a("L_h0:")
    srd(32, 8, 1152)
    srd(36, 14, 576 * 8192)
    a("v_lshlrev_b32 v8, 1, v0")
    for i in range(9):
        a(f"buffer_load_ushort v{10+i}, v8, s[32:35], 0 offen offset:{128*i}")
    a(f"v_lshlrev_b32 v6, 13, v{VR8}\nv_add_u32 v6, v6, v{VC16}")
    a("s_lshr_b32 s58, s5, 2\ns_mul_i32 s59, s58, 144")
    a("s_lshl_b32 s6, s59, 13\ns_lshl_b32 s7, s4, 9\ns_add_u32 s6, s6, s7\ns_and_b32 s7, s5, 3\ns_lshl_b32 s7, s7, 7\ns_add_u32 s6, s6, s7")
    for t in range(18):
        a(f"buffer_load_dwordx4 a[{4*t}:{4*t+3}], v6, s[36:39], s6 offen {wpol}")
        if t < 17: a("s_add_u32 s6, s6, 0x10000")
    a(f"ds_write_b32 v{VZ}, v{VZ} offset:{FLG}\nds_write_b32 v{VZ}, v{VZ} offset:{FLG+4}\nds_write_b32 v{VZ}, v{VZ} offset:{FLG+8}\nds_write_b32 v{VZ}, v{VZ} offset:{FLG+12}")
    a("v_mov_b32 v20, -1\nv_mov_b32 v21, -1\nv_mov_b32 v22, -1\nv_mov_b32 v23, -1")
    a(f"ds_write_b128 v{VL16}, v[20:23] offset:{DQ}")
    a(f"v_mov_b32 v24, {4*NS}\nds_write_b32 v{VZ}, v24 offset:{TK}")
    a("s_waitcnt lgkmcnt(0)\ns_barrier")
    a(f"s_load_dword s91, s[30:31], {GOFF:#x}")
    a("s_waitcnt vmcnt(18)")
    stamp(1)
    for i in range(9): a(f"v_lshlrev_b32 v{10+i}, 16, v{10+i}")
    a("v_add_f32 v19, v10, v11")
    for i in range(2, 9): a(f"v_add_f32 v19, v19, v{10+i}")
    wave_sum(19, 20)
    a("v_mul_f32 v19, 0x3ae38e39, v19")
    rbf(21, 19)
    a("v_sub_f32 v22, v10, v19\nv_mul_f32 v23, v22, v22")
    for i in range(1, 9):
        a(f"v_sub_f32 v22, v{10+i}, v19\nv_fmac_f32 v23, v22, v22")
    wave_sum(23, 20)
    a("v_mul_f32 v23, 0x3ae38e39, v23")
    rbf(23, 23)
    a("v_add_f32 v23, 0x3727c5ac, v23")
    rbf(23, 23)
    a("v_sqrt_f32 v23, v23")
    rbf(23, 23)
    a("v_rcp_f32 v24, v23")
    for i in range(9):
        a(f"v_sub_f32 v22, v{10+i}, v21")
        rbf(22, 22)
        a("v_mul_f32 v25, v22, v24\nv_fma_f32 v26, -v25, v23, v22\nv_fma_f32 v25, v26, v24, v25")
        a(f"v_cvt_pk_bf16_f32 v{48+i}, v25, v25")
        a(f"ds_write_b32 v{VL4}, v{48+i} offset:{XS + 256*i}")
    a(f"s_lshl_b32 s6, s59, 2\nv_lshlrev_b32 v7, 2, v{VR8}\nv_add_u32 v7, s6, v7")
    for t in range(18):
        a(f"ds_read_b32 v{64+t}, v7 offset:{XS + 32*t}")
    stamp(2)
    zero(range(20, 24))
    a("s_waitcnt lgkmcnt(0)")
    a("s_add_u32 s91, s91, 1")
    for t in range(18):
        b = 24 + 4 * (t & 1)
        buildB(b, 64 + t)
        a(f"s_waitcnt vmcnt({17 - t})")
        mfma(20, f"a[{4*t}:{4*t+3}]", b)
    a(f"ds_write_b128 v{VL16}, v[20:23] offset:{SCR}")
    a(f"ds_read_b32 v24, v{VFOLD} offset:{SCR}\nds_read_b32 v25, v{VFOLD} offset:{SCR+640}")
    a("s_waitcnt lgkmcnt(0)")
    a("v_add_f32 v24, v24, v25\nv_mov_b32 v25, s91")
    spin_lds(4, 1, 26, VZ)
    a(f"s_lshl_b32 s6, s56, 9\ns_add_u32 s6, s6, {QP:#x}\nv_lshlrev_b32 v8, 3, v0")
    a(f"buffer_store_dwordx2 v[24:25], v8, s[40:43], s6 offen sc1")
    stamp(3)
    if ackwait: a("s_waitcnt vmcnt(0)")
    a(f"s_lshl_b32 s6, s4, 13\ns_add_u32 s6, s6, {QP:#x}\ns_add_u32 s7, s6, 4096\nv_lshlrev_b32 v8, 5, v0")
    a("s_mov_b32 s82, 0")
    a("L_h0_gq:")
    for k in range(4):
        for hf in range(2):
            r = 64 + 8 * k + 4 * hf
            a(f"buffer_load_dwordx4 v[{r}:{r+3}], v8, s[40:43], s{6 + (k >> 1)} offen offset:{2048*(k & 1) + 16*hf} sc1")
    a("s_waitcnt vmcnt(0)")
    tag_check([65 + 2 * i for i in range(16)], 26, 27, "L_h0_gq_retry")
    stamp(4)
    for r in range(4):
        a(f"v_add_f32 v{64+2*r}, v{64+2*r}, v{72+2*r}\nv_add_f32 v{64+2*r}, v{64+2*r}, v{80+2*r}\nv_add_f32 v{64+2*r}, v{64+2*r}, v{88+2*r}")
    a("v_cvt_pk_bf16_f32 v64, v64, v66\nv_cvt_pk_bf16_f32 v65, v68, v70")
    a("v_lshlrev_b32 v8, 3, v0")
    a(f"ds_write_b64 v8, v[64:65] offset:{QL}")
    a("v_mov_b32 v10, 1\ns_waitcnt lgkmcnt(0)")
    a(f"ds_write_b32 v{VZ}, v10 offset:{FLG}")
    dst(2); dst(3, neg=True)
    if dbg:
        a(f"s_lshl_b32 s6, s2, 9\ns_add_u32 s6, s6, {DBGO:#x}")
        a("buffer_store_dwordx2 v[64:65], v8, s[40:43], s6 offen")
    stamp(5)
    a("s_branch L_hjob")
    a("L_h0_gq_retry:")
    spin_guard("L_h0_gq", qsleep)

    a("L_hwait:")
    spin_lds(0, 1, 26, VZ)
    a("L_hjob:")
    a("s_cmp_lt_u32 s5, 9\ns_cbranch_scc1 L_job_wo")
    a("s_cmp_eq_u32 s5, 9\ns_cbranch_scc1 L_job_fin")
    a("s_cmp_eq_u32 s3, 0\ns_cbranch_scc1 L_preB1")
    if not abl_ffn: a("s_cmp_lt_u32 s57, 72\ns_cbranch_scc1 L_job_ffn")

    a("L_preB1:")
    a("s_cmp_eq_u32 s3, 0\ns_cbranch_scc0 L_B1")
    table_lookup()
    a(f"s_mul_i32 s72, s4, {cstride}\ns_add_u32 s72, s72, {CNT+coff:#x}")
    if prog: a("s_mov_b32 s77, 0\ns_mov_b32 s78, 0")
    a(f"s_mov_b32 s73, 0")
    a("s_lshl_b32 s74, s67, 2")
    a("s_mov_b32 s82, 0")
    a("L_disp:")
    a(f"ds_read_b32 v96, v{VZ} offset:{TK}")
    a("s_waitcnt lgkmcnt(0)")
    a("v_readfirstlane_b32 s75, v96")
    a(f"s_sub_u32 s75, s75, s74\ns_ashr_i32 s75, s75, 2\ns_add_u32 s75, s75, {1 + LA}\ns_sub_u32 s75, s75, s73")
    a("s_cmp_gt_i32 s75, 0\ns_cbranch_scc1 L_disp_go")
    spin_guard("L_disp", 4)
    a("L_disp_go:")
    a("s_min_u32 s75, s75, 4")
    if prog: stamp(4)
    a("v_mov_b32 v96, s75\ns_mov_b64 exec, 1")
    a(f"buffer_atomic_add v96, v{VZ}, s[40:43], s72 offen sc0 sc1")
    a("s_waitcnt vmcnt(0)")
    if prog: a("s_memrealtime s[84:85]\ns_waitcnt lgkmcnt(0)\ns_sub_u32 s6, s84, s96\ns_add_u32 s77, s77, s6\ns_add_u32 s78, s78, 1")
    a("v_readfirstlane_b32 s76, v96")
    a("s_lshl_b32 s6, 1, s75\ns_sub_u32 s6, s6, 1\ns_mov_b32 exec_lo, s6")
    a(f"v_add_u32 v96, s76, v0\nv_add_u32 v97, {1024 - P}, v96\nv_lshlrev_b32 v97, 14, v97")
    a(f"v_mov_b32 v98, 0x1000000\nv_cmp_gt_u32 vcc, {P}, v96\nv_cndmask_b32 v97, v98, v97, vcc")
    a(f"s_lshl_b32 s6, s73, 2\nv_add_u32 v98, s6, v{VL4}")
    a(f"ds_write_b32 v98, v97 offset:{DQ}")
    a("s_mov_b64 exec, -1")
    a("s_add_u32 s73, s73, s75\ns_add_u32 s76, s76, s75\ns_mov_b32 s82, 0")
    a(f"s_cmp_le_u32 s76, {P}\ns_cbranch_scc1 L_disp")
    if prog and stamps: a("s_mov_b32 s93, s73\ns_mov_b32 s94, s77\ns_mov_b32 s95, s78")
    if wodefer:
        a(f"v_mov_b32 v96, 1\nds_write_b32 v{VZ}, v96 offset:{FLG+12}")
        a("s_cmp_lt_u32 s5, 9\ns_cbranch_scc1 L_wo_loads")
    a("L_B1:")
    srd(48, 26, 1152)
    a("v_lshrrev_b32 v88, 4, v0\nv_and_b32 v89, 15, v0")
    a("v_mul_u32_u24 v94, 1152, v88\nv_lshlrev_b32 v90, 4, v89\nv_add_u32 v90, v94, v90")
    a("v_bfe_u32 v91, v0, 3, 1\nv_lshlrev_b32 v91, 3, v91\nv_add3_u32 v91, v94, v91, s91x".replace("s91x", "v91") if False else "v_bfe_u32 v91, v0, 3, 1\nv_lshlrev_b32 v91, 3, v91\nv_add_u32 v91, v94, v91\nv_add_u32 v91, 1024, v91")
    a(f"v_lshlrev_b32 v92, 2, v{VR8}")
    a("v_lshlrev_b32 v93, 3, v89\nv_lshlrev_b32 v94, 1, v88\nv_add_u32 v93, v93, v94\ns_lshl_b32 s61, s4, 7")
    stamp(6)
    a("s_waitcnt lgkmcnt(0)\ns_barrier")
    a("s_cmp_lt_u32 s5, 9\ns_cbranch_scc1 L_wo_post")
    a("s_cmp_eq_u32 s5, 9\ns_cbranch_scc0 L_exit")
    a("s_cmp_lt_u32 s4, 9\ns_cbranch_scc0 L_exit")
    a("s_cmp_eq_u32 s3, 0\ns_cbranch_scc1 L_fin_post")
    a("s_branch L_exit")

    a("L_job_wo:")
    if wodefer:
        a("s_cmp_eq_u32 s3, 0\ns_cbranch_scc1 L_preB1")
        spin_lds(12, 1, 26, VZ, sleep=8)
    a("L_wo_loads:")
    srd(36, 16, 4096 * 1152)
    a(f"v_mul_u32_u24 v6, 1152, v{VR8}\nv_add_u32 v6, v6, v{VC16}")
    a("s_lshl_b32 s6, s4, 8\ns_lshl_b32 s7, s3, 5\ns_add_u32 s6, s6, s7\ns_mul_i32 s6, s6, 1152\ns_lshl_b32 s7, s5, 7\ns_add_u32 s6, s6, s7")
    for t in range(8):
        off = (128 * (t >> 2) + 8 * (t & 3)) * 1152
        a(f"s_add_u32 s7, s6, {off}")
        if not abl_wo: a(f"buffer_load_dwordx4 a[{4*t}:{4*t+3}], v6, s[36:39], s7 offen {wpol}")
    if wodefer: a("s_branch L_B1")
    else: a("s_waitcnt vmcnt(0)\ns_branch L_preB1")
    a("L_wo_post:")
    if tailst: stamp(1)
    a(f"s_mul_i32 s60, s4, {16*1152}\ns_add_u32 s60, s60, {AP:#x}")
    for i in range(4): a(f"s_add_u32 s{64+i}, s60, {4608*i}")
    a("s_lshl_b32 s7, s3, 8")
    for i in range(4): a(f"s_add_u32 s{68+i}, s{64+i}, s7")
    a("s_mov_b32 s82, 0")
    if mpoll:
        for i in range(4): a(f"s_mov_b64 s[{72+2*i}:{73+2*i}], -1")
    a("L_wo_g:")
    for i in range(4):
        if mpoll: a(f"s_cmp_eq_u64 s[{72+2*i}:{73+2*i}], 0\ns_cbranch_scc1 L_wo_sk{i}\ns_mov_b64 exec, s[{72+2*i}:{73+2*i}]")
        a(f"buffer_load_dwordx4 v[{64+4*i}:{67+4*i}], v90, s[40:43], s{68+i} offen sc1")
        a(f"buffer_load_dwordx2 v[{80+2*i}:{81+2*i}], v91, s[40:43], s{64+i} offen sc1")
        if mpoll: a(f"L_wo_sk{i}:")
    if mpoll:
        a("s_mov_b64 exec, -1\ns_waitcnt vmcnt(0)")
        for i in range(4):
            a(f"v_max3_u32 v{24+i}, v{64+4*i}, v{65+4*i}, v{66+4*i}")
        for i in range(4):
            a(f"v_max3_u32 v{24+i}, v{24+i}, v{67+4*i}, v{80+2*i}")
        for i in range(4):
            a(f"v_max_u32 v{24+i}, v{24+i}, v{81+2*i}")
        for i in range(4):
            a(f"v_cmp_eq_u32 s[{72+2*i}:{73+2*i}], -1, v{24+i}")
        a("s_or_b64 s[6:7], s[72:73], s[74:75]\ns_or_b64 vcc, s[76:77], s[78:79]\ns_or_b64 vcc, vcc, s[6:7]\ns_cbranch_scc1 L_wo_retry")
    else:
        a("s_waitcnt vmcnt(0)")
        valid_check(range(64, 88), 26, "L_wo_retry")
    if tailst: stamp(2)
    a("v_max3_f32 v20, v80, v82, v84\nv_max_f32 v20, v20, v86")
    allrow_op("v_max_f32", 20, 21)
    for i in range(4): a(f"v_sub_f32 v{24+i}, v{80+2*i}, v20")
    for i in range(4): a(f"v_exp_f32 v{24+i}, v{24+i}")
    a("v_mul_f32 v22, v24, v81\nv_fmac_f32 v22, v25, v83\nv_fmac_f32 v22, v26, v85\nv_fmac_f32 v22, v27, v87")
    allrow_op("v_add_f32", 22, 21)
    for r in range(4):
        a(f"v_mul_f32 v{28+r}, v24, v{64+r}")
        for i in range(1, 4):
            a(f"v_fmac_f32 v{28+r}, v{24+i}, v{64+4*i+r}")
    treduce(28)
    a("v_rcp_f32 v22, v22")
    a("v_mul_f32 v28, v28, v22\nv_cvt_pk_bf16_f32 v28, v28, v28")
    for t in range(8):
        off = (16 * (t & 3) + 8 * (t >> 2)) * 4
        a(f"ds_bpermute_b32 v{32+t}, v92, v28 offset:{off}")
    zero(range(20, 24))
    a("s_waitcnt lgkmcnt(0)")
    for t in range(8):
        b = 44 + 4 * (t & 1)
        buildB(b, 32 + t)
        mfma(20, f"a[{4*t}:{4*t+3}]", b)
    a(f"s_lshl_b32 s6, s3, 11\nv_add_u32 v8, s6, v{VL16}")
    a(f"ds_write_b128 v8, v[20:23] offset:{SCR}")
    if tailst: stamp(3)
    a("s_waitcnt lgkmcnt(0)\ns_barrier")
    if tailst: stamp(4)
    a("s_cmp_eq_u32 s3, 0\ns_cbranch_scc0 L_exit")
    for w in range(4):
        a(f"ds_read_b32 v{24+2*w}, v{VFOLD} offset:{SCR + 2048*w}\nds_read_b32 v{25+2*w}, v{VFOLD} offset:{SCR + 2048*w + 640}")
    a("s_waitcnt lgkmcnt(0)")
    a("v_add_f32 v24, v24, v25\nv_add_f32 v26, v26, v27\nv_add_f32 v28, v28, v29\nv_add_f32 v30, v30, v31")
    a("v_add_f32 v24, v24, v26\nv_add_f32 v28, v28, v30\nv_add_f32 v24, v24, v28")
    a(f"s_lshl_b32 s6, s5, 4\ns_add_u32 s6, s6, s4\ns_lshl_b32 s6, s6, 8\ns_add_u32 s6, s6, {L2:#x}")
    a(f"buffer_store_dword v24, v{VL4}, s[40:43], s6 offen sc1")
    stamp(7)
    a("s_branch L_exit")
    a("L_wo_retry:")
    spin_guard("L_wo_g", 1)

    a("L_job_fin:")
    a("s_cmp_lt_u32 s4, 9\ns_cbranch_scc0 L_preB1")
    a("s_cmp_eq_u32 s3, 0\ns_cbranch_scc0 L_preB1")
    srd(32, 8, 1152)
    a("v_and_b32 v10, 15, v0\nv_lshlrev_b32 v11, 3, v10\nv_lshrrev_b32 v12, 4, v0\nv_lshlrev_b32 v13, 1, v12\nv_add_u32 v11, v11, v13")
    a("s_lshl_b32 s61, s4, 7")
    a("buffer_load_ushort v15, v11, s[32:35], s61 offen")
    a("v_lshlrev_b32 v16, 9, v0\nv_add_u32 v16, 4, v16")
    a("s_mov_b32 s82, 0")
    a("L_fin_flags:")
    for i in range(4):
        a(f"s_mov_b32 s6, {QP + 32768*i:#x}\nbuffer_load_dword v{20+i}, v16, s[40:43], s6 offen sc1")
    a("s_waitcnt vmcnt(0)")
    tag_check([20, 21, 22, 23], 26, 27, "L_fin_flags_retry")
    a("s_cmp_eq_u32 s4, 0\ns_cbranch_scc0 L_fin_flags_ok")
    a(f"v_mov_b32 v20, s91\ns_mov_b32 s6, {GOFF:#x}\ns_mov_b64 exec, 1")
    a(f"buffer_store_dword v20, v{VZ}, s[40:43], s6 offen sc1\ns_mov_b64 exec, -1")
    a("L_fin_flags_ok:")
    a("v_mul_u32_u24 v12, 2304, v12\nv_lshlrev_b32 v13, 4, v10\nv_add_u32 v12, v12, v13")
    a(f"s_lshl_b32 s62, s4, 8\ns_add_u32 s62, s62, {FP:#x}")
    a(f"v_mul_u32_u24 v16, 2304, v0\nv_min_u32 v18, 7, v0\nv_mul_u32_u24 v18, 2304, v18\ns_add_u32 s63, s62, {64*2304}")
    a("s_mov_b32 s82, 0")
    if abl_ffn: a("v_mov_b32 v17, 0\nv_lshlrev_b32 v15, 16, v15\ns_branch L_preB1")
    a("L_fin_p:")
    a("buffer_load_dword v20, v16, s[40:43], s62 offen sc1\nbuffer_load_dword v21, v18, s[40:43], s63 offen sc1\ns_waitcnt vmcnt(0)")
    a("v_max_u32 v20, v20, v21\nv_cmp_eq_u32 vcc, -1, v20\ns_cmp_lg_u64 vcc, 0\ns_cbranch_scc1 L_fin_p_retry")
    a("s_mov_b32 s82, 0")
    a("L_fin_f:")
    a("s_mov_b32 s6, s62")
    for i in range(18):
        a(f"buffer_load_dwordx4 v[{48+4*i}:{51+4*i}], v12, s[40:43], s6 offen sc1")
        if i < 17: a("s_add_u32 s6, s6, 9216")
    a("s_waitcnt vmcnt(0)")
    valid_check(range(48, 120), 26, "L_fin_f_retry")
    for i in range(1, 18):
        for r in range(4):
            a(f"v_add_f32 v{48+r}, v{48+r}, v{48+4*i+r}")
    treduce(48)
    rbf(17, 48)
    a("v_lshlrev_b32 v15, 16, v15")
    a("s_branch L_preB1")
    a("L_fin_post:")
    if tailst: stamp(1)
    a(f"s_lshl_b32 s62, s4, 12\ns_add_u32 s62, s62, {L2:#x}")
    a("s_mov_b32 s82, 0")
    a("L_fin_g:")
    for i in range(4):
        a(f"buffer_load_dwordx4 v[{48+4*i}:{51+4*i}], v{VL16}, s[40:43], s62 offen offset:{1024*i} sc1")
    a("s_waitcnt vmcnt(0)")
    valid_check(range(48, 64), 26, "L_fin_g_retry")
    if tailst: stamp(2)
    for r in range(4):
        a(f"v_add_f32 v{48+r}, v{48+r}, v{52+r}\nv_add_f32 v{56+r}, v{56+r}, v{60+r}\nv_add_f32 v{48+r}, v{48+r}, v{56+r}")
    treduce(48)
    rbf(48, 48)
    a("v_add_f32 v48, v15, v48")
    rbf(48, 48)
    a("v_add_f32 v48, v48, v17\nv_cvt_pk_bf16_f32 v48, v48, v48")
    a(f"buffer_store_short v48, v93, s[48:51], s61 offen {outpol}")
    dst(6)
    stamp(7)
    a("s_branch L_exit")
    a("L_fin_flags_retry:")
    spin_guard("L_fin_flags", 32)
    a("L_fin_p_retry:")
    spin_guard("L_fin_p", 64)
    a("L_fin_f_retry:")
    spin_guard("L_fin_f", 16)
    a("L_fin_g_retry:")
    spin_guard("L_fin_g", 1)

    a("L_job_ffn:")
    srd(32, 20, 576 * 9216)
    srd(36, 22, 576 * 9216)
    srd(48, 24, 4608 * 1152)
    a("s_sub_u32 s58, s3, 1")
    a(f"v_mul_u32_u24 v6, 9216, v{VR8}\nv_add_u32 v6, v6, v{VC16}")
    a(f"v_mul_u32_u24 v7, 1152, v{VR8}\nv_add_u32 v7, v7, v{VC16}")
    a(f"s_mul_i32 s60, s58, 192\ns_lshl_b32 s6, s60, 2\nv_lshlrev_b32 v10, 2, v{VR8}\nv_add_u32 v10, s6, v10")
    a("s_mul_i32 s62, s60, 9216\ns_lshl_b32 s6, s57, 7\ns_add_u32 s62, s62, s6")
    a("s_mul_i32 s63, s57, 73728\ns_mul_i32 s6, s58, 384\ns_add_u32 s63, s63, s6")
    if ffn_contig:
        a(f"v_mov_b32 v6, v{VL16}\nv_mov_b32 v7, v{VL16}")
        a("s_mul_i32 s62, s57, 73728\ns_mul_i32 s6, s58, 24576\ns_add_u32 s62, s62, s6\ns_mov_b32 s63, s62")
    loads = []
    for t in range(24): loads += [("g", t), ("u", t)]
    for t in range(8): loads += [("d", t, 0), ("d", t, 1), ("d", t, 2)]
    R = W
    def issue(i):
        ld = loads[i]; r = 4 * (i % R)
        if ld[0] == "g":
            a(f"buffer_load_dwordx4 a[{r}:{r+3}], v6, s[32:35], s62 offen {wpol}")
        elif ld[0] == "u":
            a(f"buffer_load_dwordx4 a[{r}:{r+3}], v6, s[36:39], s62 offen {wpol}\ns_add_u32 s62, s62, {1024 if ffn_contig else 8*9216}")
        else:
            a(f"buffer_load_dwordx4 a[{r}:{r+3}], v7, s[48:51], s63 offen offset:{(1024 if ffn_contig else 128)*ld[2]} {wpol}")
            if ld[2] == 2: a(f"s_add_u32 s63, s63, {3072 if ffn_contig else 8*1152}")
    for i in range(W): issue(i)
    zero(range(20, 40))
    for i, ld in enumerate(loads):
        if ld[0] == "g":
            t = ld[1]
            if t % 4 == 0:
                for u in range(4): a(f"ds_read_b32 v{48+u}, v10 offset:{XS + 32*(t+u)}")
                a("s_waitcnt lgkmcnt(0)")
            buildB(44, 48 + (t % 4))
        if ld[0] == "d" and ld[1] == 0 and ld[2] == 0:
            a(f"s_lshl_b32 s6, s58, 11\nv_add_u32 v8, s6, v{VL16}")
            a(f"ds_write_b128 v8, v[20:23] offset:{SCR}\nds_write_b128 v8, v[24:27] offset:{SCR+1024}")
            a("v_mov_b32 v11, 1\ns_waitcnt lgkmcnt(0)")
            a(f"s_mov_b64 exec, 1\nds_add_u32 v{VZ}, v11 offset:{FLG+8}\ns_mov_b64 exec, -1")
            spin_lds(8, 3, 26, VZ)
            for w in range(3):
                for m in range(2):
                    a(f"ds_read_b32 v{48+4*w+2*m}, v{VFOLD} offset:{SCR+2048*w+1024*m}\nds_read_b32 v{49+4*w+2*m}, v{VFOLD} offset:{SCR+2048*w+1024*m+640}")
            a("s_waitcnt lgkmcnt(0)")
            a("v_add_f32 v48, v48, v49\nv_add_f32 v52, v52, v53\nv_add_f32 v56, v56, v57\nv_add_f32 v48, v48, v52\nv_add_f32 v48, v48, v56")
            a("v_add_f32 v50, v50, v51\nv_add_f32 v54, v54, v55\nv_add_f32 v58, v58, v59\nv_add_f32 v50, v50, v54\nv_add_f32 v50, v50, v58")
            rbf(48, 48); rbf(50, 50)
            a("v_mul_f32 v52, v48, v48\nv_mul_f32 v52, v52, v48\nv_mul_f32 v52, 0x3d372713, v52\nv_add_f32 v52, v48, v52")
            a("v_mul_f32 v52, 0x3f4c422a, v52\nv_mul_f32 v52, 0xc038aa3b, v52\nv_exp_f32 v52, v52")
            a("v_add_f32 v52, 1.0, v52\nv_rcp_f32 v52, v52")
            a("v_mul_f32 v52, v48, v52")
            rbf(52, 52)
            a("v_mul_f32 v52, v52, v50\nv_cvt_pk_bf16_f32 v52, v52, v52")
            a(f"s_lshl_b32 s6, s58, 8\nv_add_u32 v8, s6, v{VL4}")
            a(f"ds_write_b32 v8, v52 offset:{HS}")
            a(f"v_lshlrev_b32 v8, 2, v{VR8}\nv_add_u32 v8, s6, v8")
            for t in range(8): a(f"ds_read_b32 v{64+t}, v8 offset:{HS + 32*t}")
            a("s_waitcnt lgkmcnt(0)")
        if ld[0] == "d" and ld[2] == 0:
            buildB(44, 64 + ld[1])
        a(f"s_waitcnt vmcnt({min(W, len(loads) - i) - 1})")
        r = 4 * (i % R)
        acc = 20 if ld[0] == "g" else 24 if ld[0] == "u" else 28 + 4 * ld[2]
        mfma(acc, f"a[{r}:{r+3}]", 44)
        if i + W < len(loads): issue(i + W)
    a(f"s_mul_i32 s6, s58, 3072\nv_add_u32 v8, s6, v{VL16}\nv_add_u32 v9, s6, v{VFOLD}")
    for u in range(3):
        a(f"ds_write_b128 v8, v[{28+4*u}:{31+4*u}] offset:{SCR2 + 1024*u}")
    for u in range(3):
        a(f"ds_read_b32 v{48+2*u}, v9 offset:{SCR2 + 1024*u}\nds_read_b32 v{49+2*u}, v9 offset:{SCR2 + 1024*u + 640}")
    a("s_waitcnt lgkmcnt(0)")
    a(f"s_mul_i32 s6, s57, 2304\ns_mul_i32 s7, s58, 768\ns_add_u32 s6, s6, s7\ns_add_u32 s6, s6, {FP:#x}")
    for u in range(3):
        a(f"v_add_f32 v{48+2*u}, v{48+2*u}, v{49+2*u}")
        a(f"buffer_store_dword v{48+2*u}, v{VL4}, s[40:43], s6 offen offset:{256*u} sc1")
    a("s_branch L_preB1")

    a("L_stream:")
    a("s_lshl_b32 s6, s4, 24")
    a("s_add_u32 s32, s10, s6\ns_addc_u32 s33, s11, 0\ns_mov_b32 s34, 0x1000000\ns_mov_b32 s35, 0x20000")
    a("s_add_u32 s36, s12, s6\ns_addc_u32 s37, s13, 0\ns_mov_b32 s38, 0x1000000\ns_mov_b32 s39, 0x20000")
    a("s_sub_u32 s58, s3, 4")
    a("s_barrier")
    table_lookup()
    a("s_lshl_b32 s61, s62, 14")
    a("s_lshl_b32 s60, s58, 12\ns_add_u32 s60, s60, s61")
    a("s_lshl_b32 s67, s67, 2")
    a("v_lshlrev_b32 v1, 4, v0")
    STR = 16384
    def kload(s, so):
        for j in range(4):
            r = 64 + 16 * s + 4 * j
            a(f"buffer_load_dwordx4 v[{r}:{r+3}], v1, s[32:35], {so} offen offset:{1024*j} {kvpol}")
    def vload(s, so):
        for j in range(4):
            r = 16 * s + 4 * j
            a(f"buffer_load_dwordx4 a[{r}:{r+3}], v1, s[36:39], {so} offen offset:{1024*j} {kvpol}")
    if not vlag:
        for s in range(NS):
            if pace and s: a(f"s_waitcnt vmcnt({pace})")
            kload(s, "s60")
            if pace and s: a(f"s_waitcnt vmcnt({pace})")
            vload(s, "s60")
            a(f"s_mov_b32 s{70+s}, s60\ns_add_u32 s60, s60, {STR}")
    else:
        for s in range(NS): a(f"s_add_u32 s{70+s}, s60, {STR*s}")
        for s in range(NS):
            kload(s, f"s{70+s}")
            if s: vload(s - 1, f"s{69+s}")
        vload(NS - 1, f"s{69+NS}")
    stamp(1)
    a("v_mov_b32 v19, 0")
    spin_lds(0, 1, 62, 19)
    stamp(2)
    a("v_and_b32 v62, 15, v0\nv_lshlrev_b32 v62, 4, v62")
    a(f"ds_read_b128 v[6:9], v62 offset:{QL}\nds_read_b128 v[10:13], v62 offset:{QL+256}")
    a("v_mov_b32 v14, 0xf149f2ca\nv_mov_b32 v16, 0xf149f2ca\nv_mov_b32 v17, 0")
    zero(range(20, 24))
    a("s_mov_b32 s64, 0x1000000")
    a(f"s_mov_b32 s66, {L}\ns_mov_b32 s65, 0")
    a("s_waitcnt lgkmcnt(0)")
    if prog:
        a("s_lshl_b32 s80, s58, 7")
        a(f"v_lshlrev_b32 v62, 2, v0\nv_add_u32 v62, s80, v62\nv_mov_b32 v63, 0\ns_mov_b64 exec, 0xffffffff\nds_write_b32 v62, v63 offset:{PRG}\ns_mov_b64 exec, -1\ns_waitcnt lgkmcnt(0)")
    a("L_loop:")
    S0, S1, Q0, Q1 = 24, 28, 6, 10
    for s in range(NS):
        kb = 64 + 16 * s; vb = 16 * s; rs = (s + L) % NS
        a(f"s_cmp_ge_u32 s{70+s}, s64\ns_cbranch_scc1 L_loop_end")
        if prog and s == 0:
            a("s_memrealtime s[84:85]\ns_waitcnt lgkmcnt(0)\nv_mov_b32 v62, s80\nv_mov_b32 v63, s84")
            a(f"ds_write_b32 v62, v63 offset:{PRG}\ns_add_u32 s80, s80, 4")
        a(f"s_cmp_ge_u32 s65, s64\ns_cbranch_scc1 L_notk_{s}")
        if s < NS - L: a(f"s_cmp_lt_u32 s66, {NS}\ns_cbranch_scc1 L_notk_{s}")
        a(f"v_mov_b32 v62, 0\nv_mov_b32 v63, 1\ns_mov_b64 exec, 1\nds_add_rtn_u32 v63, v62, v63 offset:{TK}\ns_mov_b64 exec, -1")
        a(f"L_notk_{s}:")
        a(f"s_waitcnt vmcnt({8*L-4})")
        for e in range(4):
            for j in range(4):
                for (S, Q) in ((S0, Q0), (S1, Q1)):
                    if e == 0: a(f"v_dot2_f32_bf16 v{S+j}, v{kb+4*j}, v{Q}, 0")
                    else: a(f"v_dot2c_f32_bf16 v{S+j}, v{kb+4*j+e}, v{Q+e}")
        if s < NS - L: a(f"s_cmp_lt_u32 s66, {NS}\ns_cbranch_scc1 L_skipK_{s}")
        a(f"s_cmp_ge_u32 s65, s64\ns_cbranch_scc1 L_back_{s}")
        a("s_waitcnt lgkmcnt(0)\nv_readfirstlane_b32 s6, v63")
        a(f"s_cmp_lt_u32 s6, s67\ns_cbranch_scc0 L_dyn_{s}")
        a("s_lshl_b32 s65, s6, 12\ns_add_u32 s65, s65, s61")
        a(f"L_back_{s}:")
        a(f"s_mov_b32 s{70+rs}, s65")
        kload(rs, "s65")
        if s < NS - L: a(f"L_skipK_{s}:")
        if vlag:
            ps = (s + L - 1) % NS
            if s < NS - L + 1: a(f"s_cmp_lt_u32 s66, {NS+1}\ns_cbranch_scc1 L_skipV_{s}")
            vload(ps, f"s{70+ps}")
            if s < NS - L + 1: a(f"L_skipV_{s}:")
        for j in range(4): a(f"v_add_f32_dpp v{S0+j}, v{S0+j}, v{S0+j} row_ror:8 row_mask:0xf bank_mask:0x3")
        for j in range(4): a(f"v_add_f32_dpp v{S0+j}, v{S1+j}, v{S1+j} row_ror:8 row_mask:0xf bank_mask:0xc")
        for m in ("row_half_mirror", "quad_perm:[1,0,3,2]", "quad_perm:[2,3,0,1]"):
            for j in range(4): a(f"v_add_f32_dpp v{S0+j}, v{S0+j}, v{S0+j} {m} row_mask:0xf bank_mask:0xf")
        a("v_cvt_pk_bf16_f32 v52, v24, v25\nv_cvt_pk_bf16_f32 v53, v26, v27")
        a("v_lshlrev_b32 v48, 16, v52\nv_and_b32 v49, s90, v52\nv_lshlrev_b32 v50, 16, v53\nv_and_b32 v51, s90, v53")
        for j in range(4): a(f"v_mul_f32 v{48+j}, s89, v{48+j}")
        a("v_cvt_pk_bf16_f32 v52, v48, v49\nv_cvt_pk_bf16_f32 v53, v50, v51")
        a("v_lshlrev_b32 v54, 16, v52\nv_and_b32 v55, s90, v52\nv_lshlrev_b32 v56, 16, v53\nv_and_b32 v57, s90, v53")
        a("v_max3_f32 v19, v54, v55, v56\nv_max3_f32 v19, v19, v57, v14")
        a("v_mov_b32 v62, v19\nv_permlane16_swap_b32 v19, v62\nv_max_f32 v19, v19, v62")
        a("v_mov_b32 v62, v19\nv_permlane32_swap_b32 v19, v62\nv_max_f32 v14, v19, v62")
        a("v_mul_f32 v15, s88, v14\nv_sub_f32 v18, v16, v15")
        for j in range(4): a(f"v_fma_f32 v{54+j}, v{54+j}, s88, -v15")
        a("v_exp_f32 v18, v18")
        for j in range(4): a(f"v_exp_f32 v{54+j}, v{54+j}")
        a("v_mov_b32 v16, v15")
        for j in range(4): a(f"v_cvt_pk_bf16_f32 v{58+j}, v{54+j}, v{54+j}")
        a("v_add_f32 v19, v54, v55\nv_add_f32 v62, v56, v57")
        for r in range(4): a(f"v_mul_f32 v{20+r}, v{20+r}, v18")
        a("v_add_f32 v19, v19, v62")
        for j in range(4): buildB(32 + 4 * j, 58 + j)
        a("v_fma_f32 v17, v17, v18, v19")
        a(f"s_waitcnt vmcnt({8*(L-1) if vlag else 8*L-4})")
        for j in range(4): mfma(20, f"a[{vb+4*j}:{vb+4*j+3}]", 32 + 4 * j)
        if not vlag:
            if s < NS - L: a(f"s_cmp_lt_u32 s66, {NS}\ns_cbranch_scc1 L_skipV_{s}")
            vload(rs, "s65")
            if s < NS - L: a(f"L_skipV_{s}:")
        a("s_add_u32 s66, s66, 1")
    a("s_branch L_loop")
    for s in range(NS):
        a(f"L_dyn_{s}:")
        a("s_sub_u32 s7, s6, s67\ns_and_b32 s7, s7, -4\nv_mov_b32 v62, s7\ns_and_b32 s6, s6, 3\ns_lshl_b32 s59, s6, 12\ns_mov_b32 s82, 0")
        a(f"L_dynsp_{s}:")
        a(f"ds_read_b32 v63, v62 offset:{DQ}\ns_waitcnt lgkmcnt(0)\nv_readfirstlane_b32 s65, v63")
        a(f"s_cmp_eq_u32 s65, -1\ns_cbranch_scc1 L_dynw_{s}")
        a(f"s_add_u32 s65, s65, s59\ns_branch L_back_{s}")
        a(f"L_dynw_{s}:")
        a(f"s_sleep 1\ns_add_u32 s82, s82, 1\ns_cmp_lt_u32 s82, {SPIN_LIMIT:#x}\ns_cbranch_scc1 L_dynsp_{s}\ns_branch L_exit")
    a("L_loop_end:")
    if dstamp:
        a("s_waitcnt vmcnt(0)")
        dst(4); dst(5, neg=True)
    stamp(3)
    if prog:
        a(f"s_lshl_b32 s6, s58, 7\nv_lshlrev_b32 v62, 2, v0\nv_add_u32 v63, s6, v62\nds_read_b32 v63, v63 offset:{PRG}\ns_waitcnt lgkmcnt(0)")
        a(f"s_lshl_b32 s6, s2, 2\ns_add_u32 s6, s6, s58\ns_lshl_b32 s6, s6, 7\ns_add_u32 s6, s6, {DBGO:#x}\ns_mov_b64 exec, 0xffffffff")
        a("buffer_store_dword v63, v62, s[40:43], s6 offen\ns_mov_b64 exec, -1")
    allrow_op("v_add_f32", 17, 62)
    a(f"s_lshl_b32 s6, s58, 10\nv_add_u32 v62, s6, v1")
    a(f"ds_write_b128 v62, v[20:23] offset:{ACC}")
    a("v_bfe_u32 v63, v0, 3, 1\nv_lshlrev_b32 v63, 3, v63\ns_lshl_b32 s6, s58, 4\nv_add_u32 v62, s6, v63")
    a(f"s_mov_b64 exec, 0x101\nds_write_b64 v62, v[16:17] offset:{MLL}\ns_mov_b64 exec, -1")
    a("s_waitcnt lgkmcnt(0)\ns_barrier")
    a("s_cmp_eq_u32 s58, 0\ns_cbranch_scc0 L_exit")
    stamp(4)
    for w in range(4):
        a(f"ds_read_b128 v[{32+4*w}:{35+4*w}], v1 offset:{ACC + 1024*w}")
        a(f"ds_read_b64 v[{48+2*w}:{49+2*w}], v63 offset:{MLL + 16*w}")
    a("s_waitcnt lgkmcnt(0)")
    a("v_max3_f32 v16, v48, v50, v52\nv_max_f32 v16, v16, v54")
    for w in range(4): a(f"v_sub_f32 v{24+w}, v{48+2*w}, v16")
    for w in range(4): a(f"v_exp_f32 v{24+w}, v{24+w}")
    a("v_mul_f32 v17, v24, v49\nv_fmac_f32 v17, v25, v51\nv_fmac_f32 v17, v26, v53\nv_fmac_f32 v17, v27, v55")
    for r in range(4):
        a(f"v_mul_f32 v{20+r}, v24, v{32+r}")
        for w in range(1, 4): a(f"v_fmac_f32 v{20+r}, v{24+w}, v{32+4*w+r}")
    a(f"s_mul_i32 s6, s56, 1152\ns_add_u32 s6, s6, {AP:#x}")
    a("buffer_store_dwordx4 v[20:23], v1, s[40:43], s6 offen sc1")
    a("s_mov_b64 exec, 0x101\nbuffer_store_dwordx2 v[16:17], v63, s[40:43], s6 offen offset:1024 sc1\ns_mov_b64 exec, -1")
    stamp(5)

    a("L_exit:")
    if stamps:
        a("s_memrealtime s[84:85]\ns_waitcnt lgkmcnt(0) vmcnt(0)")
        a("s_getreg_b32 s6, hwreg(HW_REG_XCC_ID)")
        a(f"s_lshl_b32 s7, s2, 3\ns_add_u32 s7, s7, s3\ns_mul_i32 s7, s7, 48\ns_add_u32 s7, s7, {STAMP:#x}")
        for k in range(8): a(f"v_mov_b32 v{100+k}, s{92+k}")
        a("v_mov_b32 v108, s84\nv_mov_b32 v109, s6\nv_mov_b32 v110, 0\nv_mov_b32 v111, 0\nv_mov_b32 v99, 0")
        a("s_mov_b64 exec, 1")
        a("buffer_store_dwordx4 v[100:103], v99, s[40:43], s7 offen\nbuffer_store_dwordx4 v[104:107], v99, s[40:43], s7 offen offset:16\nbuffer_store_dwordx4 v[108:111], v99, s[40:43], s7 offen offset:32")
    a("L_end:")
    a("s_endpgm")
    hdr = header(256, 512, LDS_SIZE, comments=open("parallel_sum__gqa_block_cached__glu_gated_geglu__decode.s.ref").read().split("; Override")[0].strip().split("\n"))
    accum = max(128, 64 + 16 * NS)
    assert accum + max(16 * NS, 72) <= 256
    return a.text(hdr, footer(256, 102, accum), verbose=True)

if __name__ == "__main__":
    kw = {}
    for arg in sys.argv[2:]:
        k, v = arg.split("="); kw[k] = eval(v)
    open(sys.argv[1], "w").write(gen(**kw))
```

```python
import sys
from asmlib import *

QP = 0x0
AP = 0x20000
L2 = 0x68000
FP = 0x71000
GOFF = 0x99800
CNT = 0x9A000
WS_SIZE = 0xC0000
STAMP = 0x100000
DBGO = 0x120000
XS = 0x0; QL = 0x900; FLG = 0xB00; MLL = 0xB40; ACC = 0xC00; SCR = 0x2000; HS = 0x4000; SCR2 = 0x4400; DQ = 0x6800; TK = 0x6C00; PRG = 0x6C40; LDS_SIZE = 0x6E40
SPIN_LIMIT = 0x100000
VL4, VL16, VFOLD, VC16, VR8, VZ = 120, 121, 122, 123, 124, 125

def rounds_table(nf_rounds=6.9, wo_rounds=1.0):
    tabs = {}
    for grp, nf in (("lo", 5), ("hi", 4)):
        extra = [wo_rounds if c < 9 else (0.5 if c == 9 else (nf_rounds if (10 <= c < 10 + nf) else 0.0)) for c in range(16)]
        avg = (1024 + sum(extra)) / 16
        n = [int(avg - e) for e in extra]
        rem = 1024 - sum(n)
        order = sorted(range(16), key=lambda c: -((avg - extra[c]) - n[c]))
        for c in order[:rem]: n[c] += 1
        assert sum(n) == 1024
        tabs[grp] = n
    return tabs

def gen(NS=6, L=3, P=160, LA=3, stamps=False, pace=None, kvpol="nt", wpol="nt", W=12, dbg=False, nf_rounds=6.9, abl_ffn=False, abl_wo=False, ffn_contig=False, prog=False, outpol='', tailst=False, hmix=0, hxor=0, mpoll=True, wodefer=True, cstride=1024, coff=0, fperm=3, vlag=False, ackwait=False, qsleep=1, dstamp=False, touch=0, trim=False, exact0=False, ipace=None, wo_extra=None):
    a = Asm()
    def stamp(k):
        if stamps:
            a(f"s_memrealtime s[84:85]\ns_waitcnt lgkmcnt(0)\ns_mov_b32 s{92+k}, s84")
    def dst(idx, neg=False):
        if not dstamp: return
        a("s_memrealtime s[84:85]\ns_waitcnt lgkmcnt(0)")
        if neg: a("s_not_b32 s84, s84")
        a("s_mov_b32 s44, s28\ns_mov_b32 s45, s29\ns_mov_b32 s46, 256\ns_mov_b32 s47, 0x20000")
        a(f"s_mov_b64 s[86:87], exec\ns_mov_b64 exec, 1\nv_mov_b32 v18, s84\nv_mov_b32 v19, {4*idx}")
        a("buffer_atomic_umax v18, v19, s[44:47], 0 offen sc1\ns_mov_b64 exec, s[86:87]")
    def srd(base, plo, size):
        a(f"s_mov_b32 s{base}, s{plo}\ns_mov_b32 s{base+1}, s{plo+1}\ns_mov_b32 s{base+2}, {size:#x}\ns_mov_b32 s{base+3}, 0x20000")
    uid = [0]
    def lab(n):
        uid[0] += 1; return f"L_{n}_{uid[0]}"
    def spin_lds(flagoff, want, vtmp, vzero, sleep=1):
        L = lab("sp"); D = lab("spd")
        a("s_mov_b32 s82, 0")
        a(f"{L}:")
        a(f"ds_read_b32 v{vtmp}, v{vzero} offset:{FLG+flagoff}")
        a("s_waitcnt lgkmcnt(0)")
        a(f"v_readfirstlane_b32 s6, v{vtmp}")
        a(f"s_cmp_eq_u32 s6, {want}\ns_cbranch_scc1 {D}")
        a(f"s_sleep {sleep}\ns_add_u32 s82, s82, 1\ns_cmp_lt_u32 s82, {SPIN_LIMIT:#x}\ns_cbranch_scc1 {L}\ns_branch L_exit")
        a(f"{D}:")
    def allrow_op(op, v, t):
        a(f"v_mov_b32 v{t}, v{v}\nv_permlane16_swap_b32 v{v}, v{t}\n{op} v{v}, v{v}, v{t}")
        a(f"v_mov_b32 v{t}, v{v}\nv_permlane32_swap_b32 v{v}, v{t}\n{op} v{v}, v{v}, v{t}")
    def wave_sum(v, t):
        for r in (8, 4, 2, 1):
            a(f"v_add_f32_dpp v{v}, v{v}, v{v} row_ror:{r} row_mask:0xf bank_mask:0xf")
        allrow_op("v_add_f32", v, t)
    def rbf(dst, src):
        a(f"v_cvt_pk_bf16_f32 v{dst}, v{src}, v{src}\nv_and_b32 v{dst}, s90, v{dst}")
    def treduce(x):
        a(f"v_permlane16_swap_b32 v{x}, v{x+1}\nv_permlane16_swap_b32 v{x+2}, v{x+3}")
        a(f"v_add_f32 v{x}, v{x}, v{x+1}\nv_add_f32 v{x+2}, v{x+2}, v{x+3}")
        a(f"v_permlane32_swap_b32 v{x}, v{x+2}\nv_add_f32 v{x}, v{x}, v{x+2}")
    def buildB(dst, src):
        for q in range(4): a(f"v_and_b32 v{dst+q}, v{src}, v{2+q}")
    def valid_check(regs, t, retry_label):
        r = list(regs)
        a(f"v_max3_u32 v{t}, v{r[0]}, v{r[1]}, v{r[2]}")
        r = r[3:]
        while len(r) >= 2:
            a(f"v_max3_u32 v{t}, v{t}, v{r[0]}, v{r[1]}"); r = r[2:]
        if r: a(f"v_max_u32 v{t}, v{t}, v{r[0]}")
        a(f"v_cmp_eq_u32 vcc, -1, v{t}\ns_cmp_lg_u64 vcc, 0\ns_cbranch_scc1 {retry_label}")
    def tag_check(regs, t0, t1, retry_label):
        r = list(regs)
        a(f"v_min3_u32 v{t0}, v{r[0]}, v{r[1]}, v{r[2]}\nv_max3_u32 v{t1}, v{r[0]}, v{r[1]}, v{r[2]}")
        r = r[3:]
        while len(r) >= 2:
            a(f"v_min3_u32 v{t0}, v{t0}, v{r[0]}, v{r[1]}\nv_max3_u32 v{t1}, v{t1}, v{r[0]}, v{r[1]}"); r = r[2:]
        if r: a(f"v_min_u32 v{t0}, v{t0}, v{r[0]}\nv_max_u32 v{t1}, v{t1}, v{r[0]}")
        a(f"v_cmp_ne_u32 vcc, s91, v{t0}\ns_cmp_lg_u64 vcc, 0\ns_cbranch_scc1 {retry_label}")
        a(f"v_cmp_ne_u32 vcc, s91, v{t1}\ns_cmp_lg_u64 vcc, 0\ns_cbranch_scc1 {retry_label}")
    def spin_guard(loop_label, sleep):
        a((f"s_sleep {sleep}\n" if sleep else "") + f"s_add_u32 s82, s82, 1\ns_cmp_lt_u32 s82, {SPIN_LIMIT:#x}\ns_cbranch_scc1 {loop_label}\ns_branch L_exit")
    def mfma(acc, A, B):
        a(f"v_mfma_f32_16x16x32_bf16 v[{acc}:{acc+3}], {A}, v[{B}:{B+3}], v[{acc}:{acc+3}]")
    def zero(regs):
        for r in regs: a(f"v_mov_b32 v{r}, 0")

    tabs = rounds_table(nf_rounds, wo_extra if wo_extra is not None else (0.0 if wodefer in ('post', 'seen') else 1.0))
    def table_lookup():
        ent = []
        for grp in ("lo", "hi"):
            st = 0
            for n in tabs[grp]:
                n -= P // 16
                assert 32 <= n < 64 + 32
                ent.append(st | ((n - 40) << 11)); st += n
            assert st == 1024 - P
        for i in range(16): a(f"s_mov_b32 s{64+i}, {ent[2*i] | (ent[2*i+1] << 16):#x}")
        a("s_lshr_b32 s6, s4, 3\ns_lshl_b32 s6, s6, 4\ns_add_u32 s6, s6, s5")
        a("s_lshr_b32 s7, s6, 1\ns_mov_b32 m0, s7\ns_and_b32 s6, s6, 1\ns_lshl_b32 s6, s6, 4\ns_movrels_b32 s7, s64")
        a("s_lshr_b32 s7, s7, s6\ns_and_b32 s62, s7, 0x7ff\ns_bfe_u32 s67, s7, 0x5000b\ns_add_u32 s67, s67, 40")

    a("s_cmp_ge_u32 s2, 256\ns_cbranch_scc1 L_end")
    a("s_load_dwordx16 s[8:23], s[0:1], 0\ns_load_dwordx8 s[24:31], s[0:1], 64")
    if stamps: a("s_memrealtime s[84:85]")
    a("v_lshrrev_b32 v1, 6, v0\nv_and_b32 v0, 63, v0")
    a("s_lshr_b32 s4, s2, 4\ns_and_b32 s5, s2, 15")
    if hmix: a(f"s_and_b32 s6, s2, 7\ns_mul_i32 s6, s6, {hmix}\ns_add_u32 s4, s4, s6\ns_and_b32 s4, s4, 15")
    if hxor: a(f"s_xor_b32 s4, s4, {hxor}")
    a("v_readfirstlane_b32 s3, v1")
    a("s_mov_b32 s88, 0x3fb8aa3b\ns_mov_b32 s89, 0x3db504f3\ns_mov_b32 s90, 0xffff0000")
    a("v_and_b32 v6, 1, v0\nv_lshlrev_b32 v6, 4, v6\nv_mov_b32 v7, 0xffff\nv_lshlrev_b32 v7, v6, v7\nv_bfe_u32 v8, v0, 1, 2")
    for q in range(4):
        a(f"v_cmp_eq_u32 vcc, {q}, v8\nv_cndmask_b32 v{2+q}, 0, v7, vcc")
    a("s_lshl_b32 s56, s4, 4\ns_add_u32 s56, s56, s5")
    a("s_waitcnt lgkmcnt(0)")
    if stamps:
        a("s_mov_b32 s92, s84")
        for k in range(1, 8): a(f"s_mov_b32 s{92+k}, 0")
    srd(40, 30, DBGO + 0x40000 if (stamps or dbg) else WS_SIZE)
    if dstamp:
        a("s_cmp_eq_u32 s3, 2\ns_cbranch_scc0 L_nod0")
        dst(0, neg=True); dst(1)
        a("L_nod0:")
    a("s_cmp_ge_u32 s3, 4\ns_cbranch_scc1 L_stream")

    a(f"v_mov_b32 v{VZ}, 0\nv_lshlrev_b32 v{VL4}, 2, v0\nv_lshlrev_b32 v{VL16}, 4, v0")
    a(f"v_lshrrev_b32 v{VR8}, 3, v0\nv_and_b32 v{VC16}, 7, v0\nv_lshlrev_b32 v{VC16}, 4, v{VC16}")
    a(f"v_lshrrev_b32 v6, 5, v0\nv_lshlrev_b32 v6, 8, v6\nv_and_b32 v7, 3, v{VR8}\nv_lshlrev_b32 v7, 2, v7\nv_add3_u32 v{VFOLD}, v6, v7, v{VC16}")
    a(f"s_sub_u32 s57, s5, 10\ns_and_b32 s6, s57, 3\ns_mul_i32 s6, s6, {fperm}\ns_add_u32 s6, s6, s4\ns_and_b32 s6, s6, 15\ns_lshl_b32 s57, s57, 4\ns_add_u32 s57, s57, s6")
    a("s_cmp_eq_u32 s3, 0\ns_cbranch_scc1 L_h0")
    a("s_cmp_eq_u32 s3, 1\ns_cbranch_scc1 L_h1")
    a("s_barrier")
    a("s_branch L_hwait")

    a("L_h1:")
    a("v_mov_b32 v10, -1\nv_mov_b32 v11, -1\nv_mov_b32 v12, -1\nv_mov_b32 v13, -1")
    a(f"s_mul_i32 s6, s56, 1152\ns_add_u32 s6, s6, {AP:#x}")
    a(f"buffer_store_dwordx4 v[10:13], v{VL16}, s[40:43], s6 offen sc1")
    a(f"s_mov_b64 exec, 0xf\nbuffer_store_dword v10, v{VL4}, s[40:43], s6 offen offset:1024 sc1\ns_mov_b64 exec, -1")
    a("s_cmp_lt_u32 s5, 9\ns_cbranch_scc0 L_h1_nowo")
    a(f"s_lshl_b32 s6, s5, 4\ns_add_u32 s6, s6, s4\ns_lshl_b32 s6, s6, 8\ns_add_u32 s6, s6, {L2:#x}")
    a(f"buffer_store_dword v10, v{VL4}, s[40:43], s6 offen sc1")
    a("L_h1_nowo:")
    a("s_cmp_lt_u32 s57, 72\ns_cbranch_scc0 L_h1_noffn")
    a(f"s_mul_i32 s6, s57, 2304\ns_add_u32 s6, s6, {FP:#x}")
    a(f"buffer_store_dwordx4 v[10:13], v{VL16}, s[40:43], s6 offen sc1")
    a(f"buffer_store_dwordx4 v[10:13], v{VL16}, s[40:43], s6 offen offset:1024 sc1")
    a(f"buffer_store_dword v10, v{VL4}, s[40:43], s6 offen offset:2048 sc1")
    a("L_h1_noffn:")
    a("s_cmp_eq_u32 s5, 0\ns_cbranch_scc0 L_h1_nocnt")
    a(f"s_mul_i32 s6, s4, {cstride}\ns_add_u32 s6, s6, {CNT+coff:#x}\nv_mov_b32 v14, 0\ns_mov_b64 exec, 1")
    a(f"buffer_store_dword v14, v{VZ}, s[40:43], s6 offen sc1\ns_mov_b64 exec, -1")
    a("L_h1_nocnt:")
    a("s_barrier")
    a("s_waitcnt vmcnt(0)")
    a("v_mov_b32 v10, 1")
    a(f"ds_write_b32 v{VZ}, v10 offset:{FLG+4}")
    stamp(1)
    a("s_branch L_hwait")

    a("L_h0:")
    srd(32, 8, 1152)
    srd(36, 14, 576 * 8192)
    a("v_lshlrev_b32 v8, 1, v0")
    for i in range(9):
        a(f"buffer_load_ushort v{10+i}, v8, s[32:35], 0 offen offset:{128*i}")
    a(f"v_lshlrev_b32 v6, 13, v{VR8}\nv_add_u32 v6, v6, v{VC16}")
    a("s_lshr_b32 s58, s5, 2\ns_mul_i32 s59, s58, 144")
    a("s_lshl_b32 s6, s59, 13\ns_lshl_b32 s7, s4, 9\ns_add_u32 s6, s6, s7\ns_and_b32 s7, s5, 3\ns_lshl_b32 s7, s7, 7\ns_add_u32 s6, s6, s7")
    for t in range(18):
        a(f"buffer_load_dwordx4 a[{4*t}:{4*t+3}], v6, s[36:39], s6 offen {wpol}")
        if t < 17: a("s_add_u32 s6, s6, 0x10000")
    a(f"ds_write_b32 v{VZ}, v{VZ} offset:{FLG}\nds_write_b32 v{VZ}, v{VZ} offset:{FLG+4}\nds_write_b32 v{VZ}, v{VZ} offset:{FLG+8}\nds_write_b32 v{VZ}, v{VZ} offset:{FLG+12}")
    a("v_mov_b32 v20, -1\nv_mov_b32 v21, -1\nv_mov_b32 v22, -1\nv_mov_b32 v23, -1")
    a(f"ds_write_b128 v{VL16}, v[20:23] offset:{DQ}")
    a(f"v_mov_b32 v24, {4*NS}\nds_write_b32 v{VZ}, v24 offset:{TK}")
    a("s_waitcnt lgkmcnt(0)\ns_barrier")
    a(f"s_load_dword s91, s[30:31], {GOFF:#x}")
    a("s_waitcnt vmcnt(18)")
    stamp(1)
    for i in range(9): a(f"v_lshlrev_b32 v{10+i}, 16, v{10+i}")
    a("v_add_f32 v19, v10, v11")
    for i in range(2, 9): a(f"v_add_f32 v19, v19, v{10+i}")
    wave_sum(19, 20)
    a("v_mul_f32 v19, 0x3ae38e39, v19")
    rbf(21, 19)
    a("v_sub_f32 v22, v10, v19\nv_mul_f32 v23, v22, v22")
    for i in range(1, 9):
        a(f"v_sub_f32 v22, v{10+i}, v19\nv_fmac_f32 v23, v22, v22")
    wave_sum(23, 20)
    a("v_mul_f32 v23, 0x3ae38e39, v23")
    rbf(23, 23)
    a("v_add_f32 v23, 0x3727c5ac, v23")
    rbf(23, 23)
    a("v_sqrt_f32 v23, v23")
    rbf(23, 23)
    a("v_rcp_f32 v24, v23")
    for i in range(9):
        a(f"v_sub_f32 v22, v{10+i}, v21")
        rbf(22, 22)
        a("v_mul_f32 v25, v22, v24\nv_fma_f32 v26, -v25, v23, v22\nv_fma_f32 v25, v26, v24, v25")
        a(f"v_cvt_pk_bf16_f32 v{48+i}, v25, v25")
        a(f"ds_write_b32 v{VL4}, v{48+i} offset:{XS + 256*i}")
    a(f"s_lshl_b32 s6, s59, 2\nv_lshlrev_b32 v7, 2, v{VR8}\nv_add_u32 v7, s6, v7")
    for t in range(18):
        a(f"ds_read_b32 v{64+t}, v7 offset:{XS + 32*t}")
    stamp(2)
    zero(range(20, 24))
    a("s_waitcnt lgkmcnt(0)")
    a("s_add_u32 s91, s91, 1")
    for t in range(18):
        b = 24 + 4 * (t & 1)
        buildB(b, 64 + t)
        a(f"s_waitcnt vmcnt({17 - t})")
        mfma(20, f"a[{4*t}:{4*t+3}]", b)
    a(f"ds_write_b128 v{VL16}, v[20:23] offset:{SCR}")
    a(f"ds_read_b32 v24, v{VFOLD} offset:{SCR}\nds_read_b32 v25, v{VFOLD} offset:{SCR+640}")
    a("s_waitcnt lgkmcnt(0)")
    a("v_add_f32 v24, v24, v25\nv_mov_b32 v25, s91")
    spin_lds(4, 1, 26, VZ)
    a(f"s_lshl_b32 s6, s56, 9\ns_add_u32 s6, s6, {QP:#x}\nv_lshlrev_b32 v8, 3, v0")
    a(f"buffer_store_dwordx2 v[24:25], v8, s[40:43], s6 offen sc1")
    stamp(3)
    if ackwait: a("s_waitcnt vmcnt(0)")
    a(f"s_lshl_b32 s6, s4, 13\ns_add_u32 s6, s6, {QP:#x}\ns_add_u32 s7, s6, 4096\nv_lshlrev_b32 v8, 5, v0")
    a("s_mov_b32 s82, 0")
    a("L_h0_gq:")
    for k in range(4):
        for hf in range(2):
            r = 64 + 8 * k + 4 * hf
            a(f"buffer_load_dwordx4 v[{r}:{r+3}], v8, s[40:43], s{6 + (k >> 1)} offen offset:{2048*(k & 1) + 16*hf} sc1")
    a("s_waitcnt vmcnt(0)")
    tag_check([65 + 2 * i for i in range(16)], 26, 27, "L_h0_gq_retry")
    stamp(4)
    for r in range(4):
        a(f"v_add_f32 v{64+2*r}, v{64+2*r}, v{72+2*r}\nv_add_f32 v{64+2*r}, v{64+2*r}, v{80+2*r}\nv_add_f32 v{64+2*r}, v{64+2*r}, v{88+2*r}")
    a("v_cvt_pk_bf16_f32 v64, v64, v66\nv_cvt_pk_bf16_f32 v65, v68, v70")
    a("v_lshlrev_b32 v8, 3, v0")
    a(f"ds_write_b64 v8, v[64:65] offset:{QL}")
    a("v_mov_b32 v10, 1\ns_waitcnt lgkmcnt(0)")
    a(f"ds_write_b32 v{VZ}, v10 offset:{FLG}")
    dst(2); dst(3, neg=True)
    if dbg:
        a(f"s_lshl_b32 s6, s2, 9\ns_add_u32 s6, s6, {DBGO:#x}")
        a("buffer_store_dwordx2 v[64:65], v8, s[40:43], s6 offen")
    stamp(5)
    a("s_branch L_hjob")
    a("L_h0_gq_retry:")
    spin_guard("L_h0_gq", qsleep)

    a("L_hwait:")
    spin_lds(0, 1, 26, VZ)
    a("L_hjob:")
    a("s_cmp_lt_u32 s5, 9\ns_cbranch_scc1 L_job_wo")
    a("s_cmp_eq_u32 s5, 9\ns_cbranch_scc1 L_job_fin")
    a("s_cmp_eq_u32 s3, 0\ns_cbranch_scc1 L_preB1")
    if not abl_ffn: a("s_cmp_lt_u32 s57, 72\ns_cbranch_scc1 L_job_ffn")

    a("L_preB1:")
    a("s_cmp_eq_u32 s3, 0\ns_cbranch_scc0 L_B1")
    table_lookup()
    a(f"s_mul_i32 s72, s4, {cstride}\ns_add_u32 s72, s72, {CNT+coff:#x}")
    if prog: a("s_mov_b32 s77, 0\ns_mov_b32 s78, 0")
    a(f"s_mov_b32 s73, 0")
    a("s_lshl_b32 s74, s67, 2")
    if touch:
        a("s_lshl_b32 s6, s4, 24")
        a("s_add_u32 s32, s10, s6\ns_addc_u32 s33, s11, 0\ns_mov_b32 s34, 0x1000000\ns_mov_b32 s35, 0x20000")
        a("s_add_u32 s36, s12, s6\ns_addc_u32 s37, s13, 0\ns_mov_b32 s38, 0x1000000\ns_mov_b32 s39, 0x20000")
        a(f"s_sub_u32 s77, s74, {4*touch}\ns_mov_b32 s82, 0")
        a("L_touchw:")
        a(f"ds_read_b32 v96, v{VZ} offset:{TK}\ns_waitcnt lgkmcnt(0)\nv_readfirstlane_b32 s75, v96")
        a("s_cmp_ge_i32 s75, s77\ns_cbranch_scc1 L_touch")
        spin_guard("L_touchw", 8)
        a("L_touch:")
        a(f"v_lshlrev_b32 v97, 20, v0\nv_add_u32 v97, {(1024 - P) * 16384:#x}, v97\ns_mov_b64 exec, 7")
        a("buffer_load_dword v98, v97, s[32:35], 0 offen nt\nbuffer_load_dword v99, v97, s[36:39], 0 offen nt\ns_mov_b64 exec, -1\ns_waitcnt vmcnt(0)")
    a("s_mov_b32 s82, 0")
    a("L_disp:")
    a(f"ds_read_b32 v96, v{VZ} offset:{TK}")
    a("s_waitcnt lgkmcnt(0)")
    a("v_readfirstlane_b32 s75, v96")
    a(f"s_sub_u32 s75, s75, s74\ns_ashr_i32 s75, s75, 2\ns_add_u32 s75, s75, {1 + LA}\ns_sub_u32 s75, s75, s73")
    a("s_cmp_gt_i32 s75, 0\ns_cbranch_scc1 L_disp_go")
    spin_guard("L_disp", 4)
    a("L_disp_go:")
    a("s_min_u32 s75, s75, 4")
    if prog: stamp(4)
    a("v_mov_b32 v96, s75\ns_mov_b64 exec, 1")
    a(f"buffer_atomic_add v96, v{VZ}, s[40:43], s72 offen sc0 sc1")
    a("s_waitcnt vmcnt(0)")
    if prog: a("s_memrealtime s[84:85]\ns_waitcnt lgkmcnt(0)\ns_sub_u32 s6, s84, s96\ns_add_u32 s77, s77, s6\ns_add_u32 s78, s78, 1")
    a("v_readfirstlane_b32 s76, v96")
    a("s_lshl_b32 s6, 1, s75\ns_sub_u32 s6, s6, 1\ns_mov_b32 exec_lo, s6")
    a(f"v_add_u32 v96, s76, v0\nv_add_u32 v97, {1024 - P}, v96\nv_lshlrev_b32 v97, 14, v97")
    a(f"v_mov_b32 v98, 0x1000000\nv_cmp_gt_u32 vcc, {P}, v96\nv_cndmask_b32 v97, v98, v97, vcc")
    a(f"s_lshl_b32 s6, s73, 2\nv_add_u32 v98, s6, v{VL4}")
    a(f"ds_write_b32 v98, v97 offset:{DQ}")
    a("s_mov_b64 exec, -1")
    a("s_add_u32 s73, s73, s75\ns_add_u32 s76, s76, s75\ns_mov_b32 s82, 0")
    a(f"s_cmp_le_u32 s76, {P}\ns_cbranch_scc1 L_disp")
    if prog and stamps: a("s_mov_b32 s93, s73\ns_mov_b32 s94, s77\ns_mov_b32 s95, s78")
    if wodefer is True:
        a(f"v_mov_b32 v96, 1\nds_write_b32 v{VZ}, v96 offset:{FLG+12}")
        a("s_cmp_lt_u32 s5, 9\ns_cbranch_scc1 L_wo_loads")
    if wodefer == "seen":
        a("s_cmp_lt_u32 s5, 9\ns_cbranch_scc1 L_wo_wait")
    a("L_B1:")
    srd(48, 26, 1152)
    a("v_lshrrev_b32 v88, 4, v0\nv_and_b32 v89, 15, v0")
    a("v_mul_u32_u24 v94, 1152, v88\nv_lshlrev_b32 v90, 4, v89\nv_add_u32 v90, v94, v90")
    a("v_bfe_u32 v91, v0, 3, 1\nv_lshlrev_b32 v91, 3, v91\nv_add3_u32 v91, v94, v91, s91x".replace("s91x", "v91") if False else "v_bfe_u32 v91, v0, 3, 1\nv_lshlrev_b32 v91, 3, v91\nv_add_u32 v91, v94, v91\nv_add_u32 v91, 1024, v91")
    a(f"v_lshlrev_b32 v92, 2, v{VR8}")
    a("v_lshlrev_b32 v93, 3, v89\nv_lshlrev_b32 v94, 1, v88\nv_add_u32 v93, v93, v94\ns_lshl_b32 s61, s4, 7")
    stamp(6)
    a("s_waitcnt lgkmcnt(0)\ns_barrier")
    a("s_cmp_lt_u32 s5, 9\ns_cbranch_scc1 L_wo_post")
    a("s_cmp_eq_u32 s5, 9\ns_cbranch_scc0 L_exit")
    a("s_cmp_lt_u32 s4, 9\ns_cbranch_scc0 L_exit")
    a("s_cmp_eq_u32 s3, 0\ns_cbranch_scc1 L_fin_post")
    a("s_branch L_exit")

    a("L_job_wo:")
    def wo_loads():
        srd(36, 16, 4096 * 1152)
        a(f"v_mul_u32_u24 v6, 1152, v{VR8}\nv_add_u32 v6, v6, v{VC16}")
        a("s_lshl_b32 s6, s4, 8\ns_lshl_b32 s7, s3, 5\ns_add_u32 s6, s6, s7\ns_mul_i32 s6, s6, 1152\ns_lshl_b32 s7, s5, 7\ns_add_u32 s6, s6, s7")
        for t in range(8):
            off = (128 * (t >> 2) + 8 * (t & 3)) * 1152
            a(f"s_add_u32 s7, s6, {off}")
            if not abl_wo: a(f"buffer_load_dwordx4 a[{4*t}:{4*t+3}], v6, s[36:39], s7 offen {wpol}")
    if wodefer == "post":
        a("s_branch L_preB1")
    else:
        if wodefer:
            a("s_cmp_eq_u32 s3, 0\ns_cbranch_scc1 L_preB1")
            a("L_wo_wait:")
            spin_lds(12, 4 if wodefer == "seen" else 1, 26, VZ, sleep=8 if wodefer is True else 4)
        a("L_wo_loads:")
        wo_loads()
        if wodefer: a("s_branch L_B1")
        else: a("s_waitcnt vmcnt(0)\ns_branch L_preB1")
    a("L_wo_post:")
    if tailst: stamp(1)
    if wodefer == "post":
        a("s_barrier")
        wo_loads()
    a(f"s_mul_i32 s60, s4, {16*1152}\ns_add_u32 s60, s60, {AP:#x}")
    for i in range(4): a(f"s_add_u32 s{64+i}, s60, {4608*i}")
    a("s_lshl_b32 s7, s3, 8")
    for i in range(4): a(f"s_add_u32 s{68+i}, s{64+i}, s7")
    a("s_mov_b32 s82, 0")
    if mpoll:
        for i in range(4): a(f"s_mov_b64 s[{72+2*i}:{73+2*i}], -1")
    a("L_wo_g:")
    for i in range(4):
        if mpoll: a(f"s_cmp_eq_u64 s[{72+2*i}:{73+2*i}], 0\ns_cbranch_scc1 L_wo_sk{i}\ns_mov_b64 exec, s[{72+2*i}:{73+2*i}]")
        a(f"buffer_load_dwordx4 v[{64+4*i}:{67+4*i}], v90, s[40:43], s{68+i} offen sc1")
        a(f"buffer_load_dwordx2 v[{80+2*i}:{81+2*i}], v91, s[40:43], s{64+i} offen sc1")
        if mpoll: a(f"L_wo_sk{i}:")
    if mpoll:
        a("s_mov_b64 exec, -1\ns_waitcnt vmcnt(0)")
        for i in range(4):
            a(f"v_max3_u32 v{24+i}, v{64+4*i}, v{65+4*i}, v{66+4*i}")
        for i in range(4):
            a(f"v_max3_u32 v{24+i}, v{24+i}, v{67+4*i}, v{80+2*i}")
        for i in range(4):
            a(f"v_max_u32 v{24+i}, v{24+i}, v{81+2*i}")
        for i in range(4):
            a(f"v_cmp_eq_u32 s[{72+2*i}:{73+2*i}], -1, v{24+i}")
        a("s_or_b64 s[6:7], s[72:73], s[74:75]\ns_or_b64 vcc, s[76:77], s[78:79]\ns_or_b64 vcc, vcc, s[6:7]\ns_cbranch_scc1 L_wo_retry")
    else:
        a("s_waitcnt vmcnt(0)")
        valid_check(range(64, 88), 26, "L_wo_retry")
    if tailst: stamp(2)
    a("v_max3_f32 v20, v80, v82, v84\nv_max_f32 v20, v20, v86")
    allrow_op("v_max_f32", 20, 21)
    for i in range(4): a(f"v_sub_f32 v{24+i}, v{80+2*i}, v20")
    for i in range(4): a(f"v_exp_f32 v{24+i}, v{24+i}")
    a("v_mul_f32 v22, v24, v81\nv_fmac_f32 v22, v25, v83\nv_fmac_f32 v22, v26, v85\nv_fmac_f32 v22, v27, v87")
    allrow_op("v_add_f32", 22, 21)
    for r in range(4):
        a(f"v_mul_f32 v{28+r}, v24, v{64+r}")
        for i in range(1, 4):
            a(f"v_fmac_f32 v{28+r}, v{24+i}, v{64+4*i+r}")
    treduce(28)
    a("v_rcp_f32 v22, v22")
    a("v_mul_f32 v28, v28, v22\nv_cvt_pk_bf16_f32 v28, v28, v28")
    for t in range(8):
        off = (16 * (t & 3) + 8 * (t >> 2)) * 4
        a(f"ds_bpermute_b32 v{32+t}, v92, v28 offset:{off}")
    zero(range(20, 24))
    if trim: a(f"s_lshl_b32 s6, s3, 11\nv_add_u32 v8, s6, v{VL16}")
    a("s_waitcnt lgkmcnt(0)")
    if not trim:
        for t in range(8):
            b = 44 + 4 * (t & 1)
            buildB(b, 32 + t)
            mfma(20, f"a[{4*t}:{4*t+3}]", b)
    else:
        B = [44, 48, 52, 56]
        buildB(B[0], 32); buildB(B[1], 33)
        for t in range(8):
            if t + 2 < 8: buildB(B[(t + 2) % 4], 32 + t + 2)
            mfma(20, f"a[{4*t}:{4*t+3}]", B[t % 4])
    if not trim: a(f"s_lshl_b32 s6, s3, 11\nv_add_u32 v8, s6, v{VL16}")
    a(f"ds_write_b128 v8, v[20:23] offset:{SCR}")
    if tailst: stamp(3)
    a("s_waitcnt lgkmcnt(0)\ns_barrier")
    if tailst: stamp(4)
    a("s_cmp_eq_u32 s3, 0\ns_cbranch_scc0 L_exit")
    for w in range(4):
        a(f"ds_read_b32 v{24+2*w}, v{VFOLD} offset:{SCR + 2048*w}\nds_read_b32 v{25+2*w}, v{VFOLD} offset:{SCR + 2048*w + 640}")
    a("s_waitcnt lgkmcnt(0)")
    a("v_add_f32 v24, v24, v25\nv_add_f32 v26, v26, v27\nv_add_f32 v28, v28, v29\nv_add_f32 v30, v30, v31")
    a("v_add_f32 v24, v24, v26\nv_add_f32 v28, v28, v30\nv_add_f32 v24, v24, v28")
    a(f"s_lshl_b32 s6, s5, 4\ns_add_u32 s6, s6, s4\ns_lshl_b32 s6, s6, 8\ns_add_u32 s6, s6, {L2:#x}")
    a(f"buffer_store_dword v24, v{VL4}, s[40:43], s6 offen sc1")
    stamp(7)
    a("s_branch L_exit")
    a("L_wo_retry:")
    spin_guard("L_wo_g", 0 if trim else 1)

    a("L_job_fin:")
    a("s_cmp_lt_u32 s4, 9\ns_cbranch_scc0 L_preB1")
    a("s_cmp_eq_u32 s3, 0\ns_cbranch_scc0 L_preB1")
    srd(32, 8, 1152)
    a("v_and_b32 v10, 15, v0\nv_lshlrev_b32 v11, 3, v10\nv_lshrrev_b32 v12, 4, v0\nv_lshlrev_b32 v13, 1, v12\nv_add_u32 v11, v11, v13")
    a("s_lshl_b32 s61, s4, 7")
    a("buffer_load_ushort v15, v11, s[32:35], s61 offen")
    a("v_lshlrev_b32 v16, 9, v0\nv_add_u32 v16, 4, v16")
    a("s_mov_b32 s82, 0")
    a("L_fin_flags:")
    for i in range(4):
        a(f"s_mov_b32 s6, {QP + 32768*i:#x}\nbuffer_load_dword v{20+i}, v16, s[40:43], s6 offen sc1")
    a("s_waitcnt vmcnt(0)")
    tag_check([20, 21, 22, 23], 26, 27, "L_fin_flags_retry")
    a("s_cmp_eq_u32 s4, 0\ns_cbranch_scc0 L_fin_flags_ok")
    a(f"v_mov_b32 v20, s91\ns_mov_b32 s6, {GOFF:#x}\ns_mov_b64 exec, 1")
    a(f"buffer_store_dword v20, v{VZ}, s[40:43], s6 offen sc1\ns_mov_b64 exec, -1")
    a("L_fin_flags_ok:")
    a("v_mul_u32_u24 v12, 2304, v12\nv_lshlrev_b32 v13, 4, v10\nv_add_u32 v12, v12, v13")
    a(f"s_lshl_b32 s62, s4, 8\ns_add_u32 s62, s62, {FP:#x}")
    a(f"v_mul_u32_u24 v16, 2304, v0\nv_min_u32 v18, 7, v0\nv_mul_u32_u24 v18, 2304, v18\ns_add_u32 s63, s62, {64*2304}")
    a("s_mov_b32 s82, 0")
    if abl_ffn: a("v_mov_b32 v17, 0\nv_lshlrev_b32 v15, 16, v15\ns_branch L_preB1")
    a("L_fin_p:")
    a("buffer_load_dword v20, v16, s[40:43], s62 offen sc1\nbuffer_load_dword v21, v18, s[40:43], s63 offen sc1\ns_waitcnt vmcnt(0)")
    a("v_max_u32 v20, v20, v21\nv_cmp_eq_u32 vcc, -1, v20\ns_cmp_lg_u64 vcc, 0\ns_cbranch_scc1 L_fin_p_retry")
    a("s_mov_b32 s82, 0")
    a("L_fin_f:")
    a("s_mov_b32 s6, s62")
    for i in range(18):
        a(f"buffer_load_dwordx4 v[{48+4*i}:{51+4*i}], v12, s[40:43], s6 offen sc1")
        if i < 17: a("s_add_u32 s6, s6, 9216")
    a("s_waitcnt vmcnt(0)")
    valid_check(range(48, 120), 26, "L_fin_f_retry")
    for i in range(1, 18):
        for r in range(4):
            a(f"v_add_f32 v{48+r}, v{48+r}, v{48+4*i+r}")
    treduce(48)
    rbf(17, 48)
    a("v_lshlrev_b32 v15, 16, v15")
    a("s_branch L_preB1")
    a("L_fin_post:")
    if tailst: stamp(1)
    a(f"s_lshl_b32 s62, s4, 12\ns_add_u32 s62, s62, {L2:#x}")
    a("s_mov_b32 s82, 0")
    a("L_fin_g:")
    for i in range(4):
        a(f"buffer_load_dwordx4 v[{48+4*i}:{51+4*i}], v{VL16}, s[40:43], s62 offen offset:{1024*i} sc1")
    a("s_waitcnt vmcnt(0)")
    valid_check(range(48, 64), 26, "L_fin_g_retry")
    if tailst: stamp(2)
    for r in range(4):
        a(f"v_add_f32 v{48+r}, v{48+r}, v{52+r}\nv_add_f32 v{56+r}, v{56+r}, v{60+r}\nv_add_f32 v{48+r}, v{48+r}, v{56+r}")
    treduce(48)
    rbf(48, 48)
    a("v_add_f32 v48, v15, v48")
    rbf(48, 48)
    a("v_add_f32 v48, v48, v17\nv_cvt_pk_bf16_f32 v48, v48, v48")
    a(f"buffer_store_short v48, v93, s[48:51], s61 offen {outpol}")
    dst(6)
    stamp(7)
    a("s_branch L_exit")
    a("L_fin_flags_retry:")
    spin_guard("L_fin_flags", 32)
    a("L_fin_p_retry:")
    spin_guard("L_fin_p", 64)
    a("L_fin_f_retry:")
    spin_guard("L_fin_f", 16)
    a("L_fin_g_retry:")
    spin_guard("L_fin_g", 0 if trim else 1)

    a("L_job_ffn:")
    srd(32, 20, 576 * 9216)
    srd(36, 22, 576 * 9216)
    srd(48, 24, 4608 * 1152)
    a("s_sub_u32 s58, s3, 1")
    a(f"v_mul_u32_u24 v6, 9216, v{VR8}\nv_add_u32 v6, v6, v{VC16}")
    a(f"v_mul_u32_u24 v7, 1152, v{VR8}\nv_add_u32 v7, v7, v{VC16}")
    a(f"s_mul_i32 s60, s58, 192\ns_lshl_b32 s6, s60, 2\nv_lshlrev_b32 v10, 2, v{VR8}\nv_add_u32 v10, s6, v10")
    a("s_mul_i32 s62, s60, 9216\ns_lshl_b32 s6, s57, 7\ns_add_u32 s62, s62, s6")
    a("s_mul_i32 s63, s57, 73728\ns_mul_i32 s6, s58, 384\ns_add_u32 s63, s63, s6")
    if ffn_contig:
        a(f"v_mov_b32 v6, v{VL16}\nv_mov_b32 v7, v{VL16}")
        a("s_mul_i32 s62, s57, 73728\ns_mul_i32 s6, s58, 24576\ns_add_u32 s62, s62, s6\ns_mov_b32 s63, s62")
    loads = []
    for t in range(24): loads += [("g", t), ("u", t)]
    for t in range(8): loads += [("d", t, 0), ("d", t, 1), ("d", t, 2)]
    R = W
    def issue(i):
        ld = loads[i]; r = 4 * (i % R)
        if ld[0] == "g":
            a(f"buffer_load_dwordx4 a[{r}:{r+3}], v6, s[32:35], s62 offen {wpol}")
        elif ld[0] == "u":
            a(f"buffer_load_dwordx4 a[{r}:{r+3}], v6, s[36:39], s62 offen {wpol}\ns_add_u32 s62, s62, {1024 if ffn_contig else 8*9216}")
        else:
            a(f"buffer_load_dwordx4 a[{r}:{r+3}], v7, s[48:51], s63 offen offset:{(1024 if ffn_contig else 128)*ld[2]} {wpol}")
            if ld[2] == 2: a(f"s_add_u32 s63, s63, {3072 if ffn_contig else 8*1152}")
    for i in range(W): issue(i)
    zero(range(20, 40))
    for i, ld in enumerate(loads):
        if ld[0] == "g":
            t = ld[1]
            if t % 4 == 0:
                for u in range(4): a(f"ds_read_b32 v{48+u}, v10 offset:{XS + 32*(t+u)}")
                a("s_waitcnt lgkmcnt(0)")
            buildB(44, 48 + (t % 4))
        if ld[0] == "d" and ld[1] == 0 and ld[2] == 0:
            a(f"s_lshl_b32 s6, s58, 11\nv_add_u32 v8, s6, v{VL16}")
            a(f"ds_write_b128 v8, v[20:23] offset:{SCR}\nds_write_b128 v8, v[24:27] offset:{SCR+1024}")
            a("v_mov_b32 v11, 1\ns_waitcnt lgkmcnt(0)")
            a(f"s_mov_b64 exec, 1\nds_add_u32 v{VZ}, v11 offset:{FLG+8}\ns_mov_b64 exec, -1")
            spin_lds(8, 3, 26, VZ)
            for w in range(3):
                for m in range(2):
                    a(f"ds_read_b32 v{48+4*w+2*m}, v{VFOLD} offset:{SCR+2048*w+1024*m}\nds_read_b32 v{49+4*w+2*m}, v{VFOLD} offset:{SCR+2048*w+1024*m+640}")
            a("s_waitcnt lgkmcnt(0)")
            a("v_add_f32 v48, v48, v49\nv_add_f32 v52, v52, v53\nv_add_f32 v56, v56, v57\nv_add_f32 v48, v48, v52\nv_add_f32 v48, v48, v56")
            a("v_add_f32 v50, v50, v51\nv_add_f32 v54, v54, v55\nv_add_f32 v58, v58, v59\nv_add_f32 v50, v50, v54\nv_add_f32 v50, v50, v58")
            rbf(48, 48); rbf(50, 50)
            a("v_mul_f32 v52, v48, v48\nv_mul_f32 v52, v52, v48\nv_mul_f32 v52, 0x3d372713, v52\nv_add_f32 v52, v48, v52")
            a("v_mul_f32 v52, 0x3f4c422a, v52\nv_mul_f32 v52, 0xc038aa3b, v52\nv_exp_f32 v52, v52")
            a("v_add_f32 v52, 1.0, v52\nv_rcp_f32 v52, v52")
            a("v_mul_f32 v52, v48, v52")
            rbf(52, 52)
            a("v_mul_f32 v52, v52, v50\nv_cvt_pk_bf16_f32 v52, v52, v52")
            a(f"s_lshl_b32 s6, s58, 8\nv_add_u32 v8, s6, v{VL4}")
            a(f"ds_write_b32 v8, v52 offset:{HS}")
            a(f"v_lshlrev_b32 v8, 2, v{VR8}\nv_add_u32 v8, s6, v8")
            for t in range(8): a(f"ds_read_b32 v{64+t}, v8 offset:{HS + 32*t}")
            a("s_waitcnt lgkmcnt(0)")
        if ld[0] == "d" and ld[2] == 0:
            buildB(44, 64 + ld[1])
        a(f"s_waitcnt vmcnt({min(W, len(loads) - i) - 1})")
        r = 4 * (i % R)
        acc = 20 if ld[0] == "g" else 24 if ld[0] == "u" else 28 + 4 * ld[2]
        mfma(acc, f"a[{r}:{r+3}]", 44)
        if i + W < len(loads): issue(i + W)
    a(f"s_mul_i32 s6, s58, 3072\nv_add_u32 v8, s6, v{VL16}\nv_add_u32 v9, s6, v{VFOLD}")
    for u in range(3):
        a(f"ds_write_b128 v8, v[{28+4*u}:{31+4*u}] offset:{SCR2 + 1024*u}")
    for u in range(3):
        a(f"ds_read_b32 v{48+2*u}, v9 offset:{SCR2 + 1024*u}\nds_read_b32 v{49+2*u}, v9 offset:{SCR2 + 1024*u + 640}")
    a("s_waitcnt lgkmcnt(0)")
    a(f"s_mul_i32 s6, s57, 2304\ns_mul_i32 s7, s58, 768\ns_add_u32 s6, s6, s7\ns_add_u32 s6, s6, {FP:#x}")
    for u in range(3):
        a(f"v_add_f32 v{48+2*u}, v{48+2*u}, v{49+2*u}")
        a(f"buffer_store_dword v{48+2*u}, v{VL4}, s[40:43], s6 offen offset:{256*u} sc1")
    a("s_branch L_preB1")

    a("L_stream:")
    a("s_lshl_b32 s6, s4, 24")
    a("s_add_u32 s32, s10, s6\ns_addc_u32 s33, s11, 0\ns_mov_b32 s34, 0x1000000\ns_mov_b32 s35, 0x20000")
    a("s_add_u32 s36, s12, s6\ns_addc_u32 s37, s13, 0\ns_mov_b32 s38, 0x1000000\ns_mov_b32 s39, 0x20000")
    a("s_sub_u32 s58, s3, 4")
    a("s_barrier")
    table_lookup()
    a("s_lshl_b32 s61, s62, 14")
    a("s_lshl_b32 s60, s58, 12\ns_add_u32 s60, s60, s61")
    a("s_lshl_b32 s67, s67, 2")
    a("v_lshlrev_b32 v1, 4, v0")
    STR = 16384
    def kload(s, so):
        for j in range(4):
            r = 64 + 16 * s + 4 * j
            a(f"buffer_load_dwordx4 v[{r}:{r+3}], v1, s[32:35], {so} offen offset:{1024*j} {kvpol}")
    def vload(s, so):
        for j in range(4):
            r = 16 * s + 4 * j
            a(f"buffer_load_dwordx4 a[{r}:{r+3}], v1, s[36:39], {so} offen offset:{1024*j} {kvpol}")
    if ipace is not None:
        a("v_mov_b32 v19, 0\ns_mov_b32 s63, 0")
        for s in range(NS):
            if s:
                a(f"s_cmp_eq_u32 s63, 1\ns_cbranch_scc1 L_pk_{s}")
                a(f"s_waitcnt vmcnt({ipace})")
                a(f"ds_read_b32 v62, v19 offset:{FLG}\ns_waitcnt lgkmcnt(0)\nv_readfirstlane_b32 s63, v62")
                a(f"L_pk_{s}:")
            kload(s, "s60")
            if s:
                a(f"s_cmp_eq_u32 s63, 1\ns_cbranch_scc1 L_pv_{s}")
                a(f"s_waitcnt vmcnt({ipace})")
                a(f"L_pv_{s}:")
            vload(s, "s60")
            a(f"s_mov_b32 s{70+s}, s60\ns_add_u32 s60, s60, {STR}")
    elif not vlag:
        for s in range(NS):
            if pace and s: a(f"s_waitcnt vmcnt({pace})")
            kload(s, "s60")
            if pace and s: a(f"s_waitcnt vmcnt({pace})")
            vload(s, "s60")
            a(f"s_mov_b32 s{70+s}, s60\ns_add_u32 s60, s60, {STR}")
    else:
        for s in range(NS): a(f"s_add_u32 s{70+s}, s60, {STR*s}")
        for s in range(NS):
            kload(s, f"s{70+s}")
            if s: vload(s - 1, f"s{69+s}")
        vload(NS - 1, f"s{69+NS}")
    stamp(1)
    a("v_mov_b32 v19, 0")
    spin_lds(0, 1, 62, 19)
    stamp(2)
    a("v_and_b32 v62, 15, v0\nv_lshlrev_b32 v62, 4, v62")
    a(f"ds_read_b128 v[6:9], v62 offset:{QL}\nds_read_b128 v[10:13], v62 offset:{QL+256}")
    a("v_mov_b32 v14, 0xf149f2ca\nv_mov_b32 v16, 0xf149f2ca\nv_mov_b32 v17, 0")
    zero(range(20, 24))
    a("s_mov_b32 s64, 0x1000000")
    a(f"s_mov_b32 s66, {L}\ns_mov_b32 s65, 0")
    a("s_waitcnt lgkmcnt(0)")
    if prog:
        a("s_lshl_b32 s80, s58, 7")
        a(f"v_lshlrev_b32 v62, 2, v0\nv_add_u32 v62, s80, v62\nv_mov_b32 v63, 0\ns_mov_b64 exec, 0xffffffff\nds_write_b32 v62, v63 offset:{PRG}\ns_mov_b64 exec, -1\ns_waitcnt lgkmcnt(0)")
    a("L_loop:")
    S0, S1, Q0, Q1 = 24, 28, 6, 10
    for s in range(NS):
        kb = 64 + 16 * s; vb = 16 * s; rs = (s + L) % NS
        a(f"s_cmp_ge_u32 s{70+s}, s64\ns_cbranch_scc1 L_loop_end")
        if prog and s == 0:
            a("s_memrealtime s[84:85]\ns_waitcnt lgkmcnt(0)\nv_mov_b32 v62, s80\nv_mov_b32 v63, s84")
            a(f"ds_write_b32 v62, v63 offset:{PRG}\ns_add_u32 s80, s80, 4")
        a(f"s_cmp_ge_u32 s65, s64\ns_cbranch_scc1 L_notk_{s}")
        if s < NS - L: a(f"s_cmp_lt_u32 s66, {NS}\ns_cbranch_scc1 L_notk_{s}")
        a(f"v_mov_b32 v62, 0\nv_mov_b32 v63, 1\ns_mov_b64 exec, 1\nds_add_rtn_u32 v63, v62, v63 offset:{TK}\ns_mov_b64 exec, -1")
        a(f"L_notk_{s}:")
        if exact0 and s < NS - L: a(f"s_cmp_lt_u32 s66, {NS}\ns_cbranch_scc1 L_kw0_{s}")
        a(f"s_waitcnt vmcnt({8*L-4})")
        if exact0 and s < NS - L: a(f"L_kwb_{s}:")
        for e in range(4):
            for j in range(4):
                for (S, Q) in ((S0, Q0), (S1, Q1)):
                    if e == 0: a(f"v_dot2_f32_bf16 v{S+j}, v{kb+4*j}, v{Q}, 0")
                    else: a(f"v_dot2c_f32_bf16 v{S+j}, v{kb+4*j+e}, v{Q+e}")
        if s < NS - L: a(f"s_cmp_lt_u32 s66, {NS}\ns_cbranch_scc1 L_skipK_{s}")
        a(f"s_cmp_ge_u32 s65, s64\ns_cbranch_scc1 L_back_{s}")
        a("s_waitcnt lgkmcnt(0)\nv_readfirstlane_b32 s6, v63")
        a(f"s_cmp_lt_u32 s6, s67\ns_cbranch_scc0 L_dyn_{s}")
        a("s_lshl_b32 s65, s6, 12\ns_add_u32 s65, s65, s61")
        a(f"L_back_{s}:")
        a(f"s_mov_b32 s{70+rs}, s65")
        kload(rs, "s65")
        if s < NS - L: a(f"L_skipK_{s}:")
        if vlag:
            ps = (s + L - 1) % NS
            if s < NS - L + 1: a(f"s_cmp_lt_u32 s66, {NS+1}\ns_cbranch_scc1 L_skipV_{s}")
            vload(ps, f"s{70+ps}")
            if s < NS - L + 1: a(f"L_skipV_{s}:")
        for j in range(4): a(f"v_add_f32_dpp v{S0+j}, v{S0+j}, v{S0+j} row_ror:8 row_mask:0xf bank_mask:0x3")
        for j in range(4): a(f"v_add_f32_dpp v{S0+j}, v{S1+j}, v{S1+j} row_ror:8 row_mask:0xf bank_mask:0xc")
        for m in ("row_half_mirror", "quad_perm:[1,0,3,2]", "quad_perm:[2,3,0,1]"):
            for j in range(4): a(f"v_add_f32_dpp v{S0+j}, v{S0+j}, v{S0+j} {m} row_mask:0xf bank_mask:0xf")
        a("v_cvt_pk_bf16_f32 v52, v24, v25\nv_cvt_pk_bf16_f32 v53, v26, v27")
        a("v_lshlrev_b32 v48, 16, v52\nv_and_b32 v49, s90, v52\nv_lshlrev_b32 v50, 16, v53\nv_and_b32 v51, s90, v53")
        for j in range(4): a(f"v_mul_f32 v{48+j}, s89, v{48+j}")
        a("v_cvt_pk_bf16_f32 v52, v48, v49\nv_cvt_pk_bf16_f32 v53, v50, v51")
        a("v_lshlrev_b32 v54, 16, v52\nv_and_b32 v55, s90, v52\nv_lshlrev_b32 v56, 16, v53\nv_and_b32 v57, s90, v53")
        a("v_max3_f32 v19, v54, v55, v56\nv_max3_f32 v19, v19, v57, v14")
        a("v_mov_b32 v62, v19\nv_permlane16_swap_b32 v19, v62\nv_max_f32 v19, v19, v62")
        a("v_mov_b32 v62, v19\nv_permlane32_swap_b32 v19, v62\nv_max_f32 v14, v19, v62")
        a("v_mul_f32 v15, s88, v14\nv_sub_f32 v18, v16, v15")
        for j in range(4): a(f"v_fma_f32 v{54+j}, v{54+j}, s88, -v15")
        a("v_exp_f32 v18, v18")
        for j in range(4): a(f"v_exp_f32 v{54+j}, v{54+j}")
        a("v_mov_b32 v16, v15")
        for j in range(4): a(f"v_cvt_pk_bf16_f32 v{58+j}, v{54+j}, v{54+j}")
        a("v_add_f32 v19, v54, v55\nv_add_f32 v62, v56, v57")
        for r in range(4): a(f"v_mul_f32 v{20+r}, v{20+r}, v18")
        a("v_add_f32 v19, v19, v62")
        for j in range(4): buildB(32 + 4 * j, 58 + j)
        a("v_fma_f32 v17, v17, v18, v19")
        if exact0 and s < NS - L: a(f"s_cmp_lt_u32 s66, {NS}\ns_cbranch_scc1 L_vw0_{s}")
        a(f"s_waitcnt vmcnt({8*(L-1) if vlag else 8*L-4})")
        if exact0 and s < NS - L: a(f"L_vwb_{s}:")
        for j in range(4): mfma(20, f"a[{vb+4*j}:{vb+4*j+3}]", 32 + 4 * j)
        if not vlag:
            if s < NS - L: a(f"s_cmp_lt_u32 s66, {NS}\ns_cbranch_scc1 L_skipV_{s}")
            vload(rs, "s65")
            if s < NS - L: a(f"L_skipV_{s}:")
        a("s_add_u32 s66, s66, 1")
    a("s_branch L_loop")
    if exact0:
        for s in range(NS - L):
            a(f"L_kw0_{s}:\ns_waitcnt vmcnt({8*(NS-1-s)+4})\ns_branch L_kwb_{s}")
            a(f"L_vw0_{s}:\ns_waitcnt vmcnt({8*(NS-1-s)})\ns_branch L_vwb_{s}")
    for s in range(NS):
        a(f"L_dyn_{s}:")
        a("s_sub_u32 s7, s6, s67\ns_and_b32 s7, s7, -4\nv_mov_b32 v62, s7\ns_and_b32 s6, s6, 3\ns_lshl_b32 s59, s6, 12\ns_mov_b32 s82, 0")
        a(f"L_dynsp_{s}:")
        a(f"ds_read_b32 v63, v62 offset:{DQ}\ns_waitcnt lgkmcnt(0)\nv_readfirstlane_b32 s65, v63")
        a(f"s_cmp_eq_u32 s65, -1\ns_cbranch_scc1 L_dynw_{s}")
        if wodefer == "seen":
            a(f"s_add_u32 s65, s65, s59\ns_cmp_ge_u32 s65, s64\ns_cbranch_scc0 L_back_{s}")
            a(f"v_mov_b32 v62, 0\nv_mov_b32 v63, 1\ns_mov_b64 exec, 1\nds_add_u32 v62, v63 offset:{FLG+12}\ns_mov_b64 exec, -1\ns_branch L_back_{s}")
        else:
            a(f"s_add_u32 s65, s65, s59\ns_branch L_back_{s}")
        a(f"L_dynw_{s}:")
        a(f"s_sleep 1\ns_add_u32 s82, s82, 1\ns_cmp_lt_u32 s82, {SPIN_LIMIT:#x}\ns_cbranch_scc1 L_dynsp_{s}\ns_branch L_exit")
    a("L_loop_end:")
    if dstamp:
        a("s_waitcnt vmcnt(0)")
        dst(4); dst(5, neg=True)
    stamp(3)
    if prog:
        a(f"s_lshl_b32 s6, s58, 7\nv_lshlrev_b32 v62, 2, v0\nv_add_u32 v63, s6, v62\nds_read_b32 v63, v63 offset:{PRG}\ns_waitcnt lgkmcnt(0)")
        a(f"s_lshl_b32 s6, s2, 2\ns_add_u32 s6, s6, s58\ns_lshl_b32 s6, s6, 7\ns_add_u32 s6, s6, {DBGO:#x}\ns_mov_b64 exec, 0xffffffff")
        a("buffer_store_dword v63, v62, s[40:43], s6 offen\ns_mov_b64 exec, -1")
    allrow_op("v_add_f32", 17, 62)
    a(f"s_lshl_b32 s6, s58, 10\nv_add_u32 v62, s6, v1")
    a(f"ds_write_b128 v62, v[20:23] offset:{ACC}")
    a("v_bfe_u32 v63, v0, 3, 1\nv_lshlrev_b32 v63, 3, v63\ns_lshl_b32 s6, s58, 4\nv_add_u32 v62, s6, v63")
    a(f"s_mov_b64 exec, 0x101\nds_write_b64 v62, v[16:17] offset:{MLL}\ns_mov_b64 exec, -1")
    a("s_waitcnt lgkmcnt(0)\ns_barrier")
    a("s_cmp_eq_u32 s58, 0\ns_cbranch_scc0 L_exit")
    stamp(4)
    for w in range(4):
        a(f"ds_read_b128 v[{32+4*w}:{35+4*w}], v1 offset:{ACC + 1024*w}")
        a(f"ds_read_b64 v[{48+2*w}:{49+2*w}], v63 offset:{MLL + 16*w}")
    a("s_waitcnt lgkmcnt(0)")
    a("v_max3_f32 v16, v48, v50, v52\nv_max_f32 v16, v16, v54")
    for w in range(4): a(f"v_sub_f32 v{24+w}, v{48+2*w}, v16")
    for w in range(4): a(f"v_exp_f32 v{24+w}, v{24+w}")
    a("v_mul_f32 v17, v24, v49\nv_fmac_f32 v17, v25, v51\nv_fmac_f32 v17, v26, v53\nv_fmac_f32 v17, v27, v55")
    for r in range(4):
        a(f"v_mul_f32 v{20+r}, v24, v{32+r}")
        for w in range(1, 4): a(f"v_fmac_f32 v{20+r}, v{24+w}, v{32+4*w+r}")
    a(f"s_mul_i32 s6, s56, 1152\ns_add_u32 s6, s6, {AP:#x}")
    a("buffer_store_dwordx4 v[20:23], v1, s[40:43], s6 offen sc1")
    a("s_mov_b64 exec, 0x101\nbuffer_store_dwordx2 v[16:17], v63, s[40:43], s6 offen offset:1024 sc1\ns_mov_b64 exec, -1")
    stamp(5)
    if wodefer == "post":
        a("s_cmp_lt_u32 s5, 9\ns_cbranch_scc0 L_exit\ns_barrier")

    a("L_exit:")
    if stamps:
        a("s_memrealtime s[84:85]\ns_waitcnt lgkmcnt(0) vmcnt(0)")
        a("s_getreg_b32 s6, hwreg(HW_REG_XCC_ID)")
        a(f"s_lshl_b32 s7, s2, 3\ns_add_u32 s7, s7, s3\ns_mul_i32 s7, s7, 48\ns_add_u32 s7, s7, {STAMP:#x}")
        for k in range(8): a(f"v_mov_b32 v{100+k}, s{92+k}")
        a("v_mov_b32 v108, s84\nv_mov_b32 v109, s6\nv_mov_b32 v110, 0\nv_mov_b32 v111, 0\nv_mov_b32 v99, 0")
        a("s_mov_b64 exec, 1")
        a("buffer_store_dwordx4 v[100:103], v99, s[40:43], s7 offen\nbuffer_store_dwordx4 v[104:107], v99, s[40:43], s7 offen offset:16\nbuffer_store_dwordx4 v[108:111], v99, s[40:43], s7 offen offset:32")
    a("L_end:")
    a("s_endpgm")
    hdr = header(256, 512, LDS_SIZE, comments=open("parallel_sum__gqa_block_cached__glu_gated_geglu__decode.s.ref").read().split("; Override")[0].strip().split("\n"))
    accum = max(128, 64 + 16 * NS)
    assert accum + max(16 * NS, 72) <= 256
    return a.text(hdr, footer(256, 102, accum), verbose=True)

if __name__ == "__main__":
    kw = {}
    for arg in sys.argv[2:]:
        k, v = arg.split("="); kw[k] = eval(v)
    open(sys.argv[1], "w").write(gen(**kw))
```

```python
import sys
from asmlib import *

QP = 0x0
AP = 0x20000
L2 = 0x68000
FP = 0x71000
GOFF = 0x99800
CNT = 0x9A000
WS_SIZE = 0xC0000
STAMP = 0x100000
DBGO = 0x120000
XS = 0x0; QL = 0x900; FLG = 0xB00; MLL = 0xB40; ACC = 0xC00; SCR = 0x2000; HS = 0x4000; SCR2 = 0x4400; DQ = 0x6800; TK = 0x6C00; PRG = 0x6C40; LDS_SIZE = 0x6E40
SPIN_LIMIT = 0x100000
VL4, VL16, VFOLD, VC16, VR8, VZ = 120, 121, 122, 123, 124, 125

def rounds_table(nf_rounds=6.9, wo_rounds=1.0):
    tabs = {}
    for grp, nf in (("lo", 5), ("hi", 4)):
        extra = [wo_rounds if c < 9 else (0.5 if c == 9 else (nf_rounds if (10 <= c < 10 + nf) else 0.0)) for c in range(16)]
        avg = (1024 + sum(extra)) / 16
        n = [int(avg - e) for e in extra]
        rem = 1024 - sum(n)
        order = sorted(range(16), key=lambda c: -((avg - extra[c]) - n[c]))
        for c in order[:rem]: n[c] += 1
        assert sum(n) == 1024
        tabs[grp] = n
    return tabs

def gen(NS=6, L=3, P=160, LA=3, stamps=False, pace=None, kvpol="nt", wpol="nt", W=12, dbg=False, nf_rounds=6.9, abl_ffn=False, abl_wo=False, ffn_contig=False, prog=False, outpol='', tailst=False, hmix=0, hxor=0, mpoll=True, wodefer=True, cstride=1024, coff=0, fperm=3, vlag=False, ackwait=False, qsleep=1, dstamp=False, touch=0, trim=False, exact0=False, ipace=None, wo_extra=None, dsleep=4, lax=0, ffn_early=False, dynwo=False):
    a = Asm()
    def stamp(k):
        if stamps:
            a(f"s_memrealtime s[84:85]\ns_waitcnt lgkmcnt(0)\ns_mov_b32 s{92+k}, s84")
    def dst(idx, neg=False):
        if not dstamp: return
        a("s_memrealtime s[84:85]\ns_waitcnt lgkmcnt(0)")
        if neg: a("s_not_b32 s84, s84")
        a("s_mov_b32 s44, s28\ns_mov_b32 s45, s29\ns_mov_b32 s46, 256\ns_mov_b32 s47, 0x20000")
        a(f"s_mov_b64 s[86:87], exec\ns_mov_b64 exec, 1\nv_mov_b32 v18, s84\nv_mov_b32 v19, {4*idx}")
        a("buffer_atomic_umax v18, v19, s[44:47], 0 offen sc1\ns_mov_b64 exec, s[86:87]")
    def srd(base, plo, size):
        a(f"s_mov_b32 s{base}, s{plo}\ns_mov_b32 s{base+1}, s{plo+1}\ns_mov_b32 s{base+2}, {size:#x}\ns_mov_b32 s{base+3}, 0x20000")
    uid = [0]
    def lab(n):
        uid[0] += 1; return f"L_{n}_{uid[0]}"
    def spin_lds(flagoff, want, vtmp, vzero, sleep=1):
        L = lab("sp"); D = lab("spd")
        a("s_mov_b32 s82, 0")
        a(f"{L}:")
        a(f"ds_read_b32 v{vtmp}, v{vzero} offset:{FLG+flagoff}")
        a("s_waitcnt lgkmcnt(0)")
        a(f"v_readfirstlane_b32 s6, v{vtmp}")
        a(f"s_cmp_eq_u32 s6, {want}\ns_cbranch_scc1 {D}")
        a(f"s_sleep {sleep}\ns_add_u32 s82, s82, 1\ns_cmp_lt_u32 s82, {SPIN_LIMIT:#x}\ns_cbranch_scc1 {L}\ns_branch L_exit")
        a(f"{D}:")
    def allrow_op(op, v, t):
        a(f"v_mov_b32 v{t}, v{v}\nv_permlane16_swap_b32 v{v}, v{t}\n{op} v{v}, v{v}, v{t}")
        a(f"v_mov_b32 v{t}, v{v}\nv_permlane32_swap_b32 v{v}, v{t}\n{op} v{v}, v{v}, v{t}")
    def wave_sum(v, t):
        for r in (8, 4, 2, 1):
            a(f"v_add_f32_dpp v{v}, v{v}, v{v} row_ror:{r} row_mask:0xf bank_mask:0xf")
        allrow_op("v_add_f32", v, t)
    def rbf(dst, src):
        a(f"v_cvt_pk_bf16_f32 v{dst}, v{src}, v{src}\nv_and_b32 v{dst}, s90, v{dst}")
    def treduce(x):
        a(f"v_permlane16_swap_b32 v{x}, v{x+1}\nv_permlane16_swap_b32 v{x+2}, v{x+3}")
        a(f"v_add_f32 v{x}, v{x}, v{x+1}\nv_add_f32 v{x+2}, v{x+2}, v{x+3}")
        a(f"v_permlane32_swap_b32 v{x}, v{x+2}\nv_add_f32 v{x}, v{x}, v{x+2}")
    def buildB(dst, src):
        for q in range(4): a(f"v_and_b32 v{dst+q}, v{src}, v{2+q}")
    def valid_check(regs, t, retry_label):
        r = list(regs)
        a(f"v_max3_u32 v{t}, v{r[0]}, v{r[1]}, v{r[2]}")
        r = r[3:]
        while len(r) >= 2:
            a(f"v_max3_u32 v{t}, v{t}, v{r[0]}, v{r[1]}"); r = r[2:]
        if r: a(f"v_max_u32 v{t}, v{t}, v{r[0]}")
        a(f"v_cmp_eq_u32 vcc, -1, v{t}\ns_cmp_lg_u64 vcc, 0\ns_cbranch_scc1 {retry_label}")
    def tag_check(regs, t0, t1, retry_label):
        r = list(regs)
        a(f"v_min3_u32 v{t0}, v{r[0]}, v{r[1]}, v{r[2]}\nv_max3_u32 v{t1}, v{r[0]}, v{r[1]}, v{r[2]}")
        r = r[3:]
        while len(r) >= 2:
            a(f"v_min3_u32 v{t0}, v{t0}, v{r[0]}, v{r[1]}\nv_max3_u32 v{t1}, v{t1}, v{r[0]}, v{r[1]}"); r = r[2:]
        if r: a(f"v_min_u32 v{t0}, v{t0}, v{r[0]}\nv_max_u32 v{t1}, v{t1}, v{r[0]}")
        a(f"v_cmp_ne_u32 vcc, s91, v{t0}\ns_cmp_lg_u64 vcc, 0\ns_cbranch_scc1 {retry_label}")
        a(f"v_cmp_ne_u32 vcc, s91, v{t1}\ns_cmp_lg_u64 vcc, 0\ns_cbranch_scc1 {retry_label}")
    def spin_guard(loop_label, sleep):
        a((f"s_sleep {sleep}\n" if sleep else "") + f"s_add_u32 s82, s82, 1\ns_cmp_lt_u32 s82, {SPIN_LIMIT:#x}\ns_cbranch_scc1 {loop_label}\ns_branch L_exit")
    def mfma(acc, A, B):
        a(f"v_mfma_f32_16x16x32_bf16 v[{acc}:{acc+3}], {A}, v[{B}:{B+3}], v[{acc}:{acc+3}]")
    def zero(regs):
        for r in regs: a(f"v_mov_b32 v{r}, 0")

    tabs = rounds_table(nf_rounds, wo_extra if wo_extra is not None else (0.0 if wodefer in ('post', 'seen') else 1.0))
    def table_lookup():
        ent = []
        for grp in ("lo", "hi"):
            st = 0
            for n in tabs[grp]:
                n -= P // 16
                assert 32 <= n < 64 + 32
                ent.append(st | ((n - 40) << 11)); st += n
            assert st == 1024 - P
        for i in range(16): a(f"s_mov_b32 s{64+i}, {ent[2*i] | (ent[2*i+1] << 16):#x}")
        a("s_lshr_b32 s6, s4, 3\ns_lshl_b32 s6, s6, 4\ns_add_u32 s6, s6, s5")
        a("s_lshr_b32 s7, s6, 1\ns_mov_b32 m0, s7\ns_and_b32 s6, s6, 1\ns_lshl_b32 s6, s6, 4\ns_movrels_b32 s7, s64")
        a("s_lshr_b32 s7, s7, s6\ns_and_b32 s62, s7, 0x7ff\ns_bfe_u32 s67, s7, 0x5000b\ns_add_u32 s67, s67, 40")

    a("s_cmp_ge_u32 s2, 256\ns_cbranch_scc1 L_end")
    a("s_load_dwordx16 s[8:23], s[0:1], 0\ns_load_dwordx8 s[24:31], s[0:1], 64")
    if stamps: a("s_memrealtime s[84:85]")
    a("v_lshrrev_b32 v1, 6, v0\nv_and_b32 v0, 63, v0")
    a("s_lshr_b32 s4, s2, 4\ns_and_b32 s5, s2, 15")
    if hmix: a(f"s_and_b32 s6, s2, 7\ns_mul_i32 s6, s6, {hmix}\ns_add_u32 s4, s4, s6\ns_and_b32 s4, s4, 15")
    if hxor: a(f"s_xor_b32 s4, s4, {hxor}")
    a("v_readfirstlane_b32 s3, v1")
    a("s_mov_b32 s88, 0x3fb8aa3b\ns_mov_b32 s89, 0x3db504f3\ns_mov_b32 s90, 0xffff0000")
    a("v_and_b32 v6, 1, v0\nv_lshlrev_b32 v6, 4, v6\nv_mov_b32 v7, 0xffff\nv_lshlrev_b32 v7, v6, v7\nv_bfe_u32 v8, v0, 1, 2")
    for q in range(4):
        a(f"v_cmp_eq_u32 vcc, {q}, v8\nv_cndmask_b32 v{2+q}, 0, v7, vcc")
    a("s_lshl_b32 s56, s4, 4\ns_add_u32 s56, s56, s5")
    a("s_waitcnt lgkmcnt(0)")
    if stamps:
        a("s_mov_b32 s92, s84")
        for k in range(1, 8): a(f"s_mov_b32 s{92+k}, 0")
    srd(40, 30, DBGO + 0x40000 if (stamps or dbg) else WS_SIZE)
    if dstamp:
        a("s_cmp_eq_u32 s3, 2\ns_cbranch_scc0 L_nod0")
        dst(0, neg=True); dst(1)
        a("L_nod0:")
    a("s_cmp_ge_u32 s3, 4\ns_cbranch_scc1 L_stream")

    a(f"v_mov_b32 v{VZ}, 0\nv_lshlrev_b32 v{VL4}, 2, v0\nv_lshlrev_b32 v{VL16}, 4, v0")
    a(f"v_lshrrev_b32 v{VR8}, 3, v0\nv_and_b32 v{VC16}, 7, v0\nv_lshlrev_b32 v{VC16}, 4, v{VC16}")
    a(f"v_lshrrev_b32 v6, 5, v0\nv_lshlrev_b32 v6, 8, v6\nv_and_b32 v7, 3, v{VR8}\nv_lshlrev_b32 v7, 2, v7\nv_add3_u32 v{VFOLD}, v6, v7, v{VC16}")
    a(f"s_sub_u32 s57, s5, 10\ns_and_b32 s6, s57, 3\ns_mul_i32 s6, s6, {fperm}\ns_add_u32 s6, s6, s4\ns_and_b32 s6, s6, 15\ns_lshl_b32 s57, s57, 4\ns_add_u32 s57, s57, s6")
    a("s_cmp_eq_u32 s3, 0\ns_cbranch_scc1 L_h0")
    a("s_cmp_eq_u32 s3, 1\ns_cbranch_scc1 L_h1")
    a("s_barrier")
    a("s_branch L_hwait")

    a("L_h1:")
    a("v_mov_b32 v10, -1\nv_mov_b32 v11, -1\nv_mov_b32 v12, -1\nv_mov_b32 v13, -1")
    a(f"s_mul_i32 s6, s56, 1152\ns_add_u32 s6, s6, {AP:#x}")
    a(f"buffer_store_dwordx4 v[10:13], v{VL16}, s[40:43], s6 offen sc1")
    a(f"s_mov_b64 exec, 0xf\nbuffer_store_dword v10, v{VL4}, s[40:43], s6 offen offset:1024 sc1\ns_mov_b64 exec, -1")
    a("s_cmp_lt_u32 s5, 9\ns_cbranch_scc0 L_h1_nowo")
    a(f"s_lshl_b32 s6, s5, 4\ns_add_u32 s6, s6, s4\ns_lshl_b32 s6, s6, 8\ns_add_u32 s6, s6, {L2:#x}")
    a(f"buffer_store_dword v10, v{VL4}, s[40:43], s6 offen sc1")
    a("L_h1_nowo:")
    a("s_cmp_lt_u32 s57, 72\ns_cbranch_scc0 L_h1_noffn")
    a(f"s_mul_i32 s6, s57, 2304\ns_add_u32 s6, s6, {FP:#x}")
    a(f"buffer_store_dwordx4 v[10:13], v{VL16}, s[40:43], s6 offen sc1")
    a(f"buffer_store_dwordx4 v[10:13], v{VL16}, s[40:43], s6 offen offset:1024 sc1")
    a(f"buffer_store_dword v10, v{VL4}, s[40:43], s6 offen offset:2048 sc1")
    a("L_h1_noffn:")
    a("s_cmp_eq_u32 s5, 0\ns_cbranch_scc0 L_h1_nocnt")
    a(f"s_mul_i32 s6, s4, {cstride}\ns_add_u32 s6, s6, {CNT+coff:#x}\nv_mov_b32 v14, 0\ns_mov_b64 exec, 1")
    a(f"buffer_store_dword v14, v{VZ}, s[40:43], s6 offen sc1")
    if dynwo: a(f"buffer_store_dword v14, v{VZ}, s[40:43], s6 offen offset:256 sc1")
    a("s_mov_b64 exec, -1")
    a("L_h1_nocnt:")
    a("s_barrier")
    a("s_waitcnt vmcnt(0)")
    a("v_mov_b32 v10, 1")
    a(f"ds_write_b32 v{VZ}, v10 offset:{FLG+4}")
    stamp(1)
    a("s_branch L_hwait")

    a("L_h0:")
    srd(32, 8, 1152)
    srd(36, 14, 576 * 8192)
    a("v_lshlrev_b32 v8, 1, v0")
    for i in range(9):
        a(f"buffer_load_ushort v{10+i}, v8, s[32:35], 0 offen offset:{128*i}")
    a(f"v_lshlrev_b32 v6, 13, v{VR8}\nv_add_u32 v6, v6, v{VC16}")
    a("s_lshr_b32 s58, s5, 2\ns_mul_i32 s59, s58, 144")
    a("s_lshl_b32 s6, s59, 13\ns_lshl_b32 s7, s4, 9\ns_add_u32 s6, s6, s7\ns_and_b32 s7, s5, 3\ns_lshl_b32 s7, s7, 7\ns_add_u32 s6, s6, s7")
    for t in range(18):
        a(f"buffer_load_dwordx4 a[{4*t}:{4*t+3}], v6, s[36:39], s6 offen {wpol}")
        if t < 17: a("s_add_u32 s6, s6, 0x10000")
    a(f"ds_write_b32 v{VZ}, v{VZ} offset:{FLG}\nds_write_b32 v{VZ}, v{VZ} offset:{FLG+4}\nds_write_b32 v{VZ}, v{VZ} offset:{FLG+8}\nds_write_b32 v{VZ}, v{VZ} offset:{FLG+12}\nds_write_b32 v{VZ}, v{VZ} offset:{FLG+16}")
    a("v_mov_b32 v20, -1\nv_mov_b32 v21, -1\nv_mov_b32 v22, -1\nv_mov_b32 v23, -1")
    a(f"ds_write_b128 v{VL16}, v[20:23] offset:{DQ}")
    a(f"v_mov_b32 v24, {4*NS}\nds_write_b32 v{VZ}, v24 offset:{TK}")
    a("s_waitcnt lgkmcnt(0)\ns_barrier")
    a(f"s_load_dword s91, s[30:31], {GOFF:#x}")
    a("s_waitcnt vmcnt(18)")
    stamp(1)
    for i in range(9): a(f"v_lshlrev_b32 v{10+i}, 16, v{10+i}")
    a("v_add_f32 v19, v10, v11")
    for i in range(2, 9): a(f"v_add_f32 v19, v19, v{10+i}")
    wave_sum(19, 20)
    a("v_mul_f32 v19, 0x3ae38e39, v19")
    rbf(21, 19)
    a("v_sub_f32 v22, v10, v19\nv_mul_f32 v23, v22, v22")
    for i in range(1, 9):
        a(f"v_sub_f32 v22, v{10+i}, v19\nv_fmac_f32 v23, v22, v22")
    wave_sum(23, 20)
    a("v_mul_f32 v23, 0x3ae38e39, v23")
    rbf(23, 23)
    a("v_add_f32 v23, 0x3727c5ac, v23")
    rbf(23, 23)
    a("v_sqrt_f32 v23, v23")
    rbf(23, 23)
    a("v_rcp_f32 v24, v23")
    for i in range(9):
        a(f"v_sub_f32 v22, v{10+i}, v21")
        rbf(22, 22)
        a("v_mul_f32 v25, v22, v24\nv_fma_f32 v26, -v25, v23, v22\nv_fma_f32 v25, v26, v24, v25")
        a(f"v_cvt_pk_bf16_f32 v{48+i}, v25, v25")
        a(f"ds_write_b32 v{VL4}, v{48+i} offset:{XS + 256*i}")
    a(f"s_lshl_b32 s6, s59, 2\nv_lshlrev_b32 v7, 2, v{VR8}\nv_add_u32 v7, s6, v7")
    for t in range(18):
        a(f"ds_read_b32 v{64+t}, v7 offset:{XS + 32*t}")
    stamp(2)
    zero(range(20, 24))
    a("s_waitcnt lgkmcnt(0)")
    if ffn_early: a(f"v_mov_b32 v26, 1\nds_write_b32 v{VZ}, v26 offset:{FLG+16}")
    a("s_add_u32 s91, s91, 1")
    for t in range(18):
        b = 24 + 4 * (t & 1)
        buildB(b, 64 + t)
        a(f"s_waitcnt vmcnt({17 - t})")
        mfma(20, f"a[{4*t}:{4*t+3}]", b)
    a(f"ds_write_b128 v{VL16}, v[20:23] offset:{SCR}")
    a(f"ds_read_b32 v24, v{VFOLD} offset:{SCR}\nds_read_b32 v25, v{VFOLD} offset:{SCR+640}")
    a("s_waitcnt lgkmcnt(0)")
    a("v_add_f32 v24, v24, v25\nv_mov_b32 v25, s91")
    spin_lds(4, 1, 26, VZ)
    a(f"s_lshl_b32 s6, s56, 9\ns_add_u32 s6, s6, {QP:#x}\nv_lshlrev_b32 v8, 3, v0")
    a(f"buffer_store_dwordx2 v[24:25], v8, s[40:43], s6 offen sc1")
    stamp(3)
    if ackwait: a("s_waitcnt vmcnt(0)")
    a(f"s_lshl_b32 s6, s4, 13\ns_add_u32 s6, s6, {QP:#x}\ns_add_u32 s7, s6, 4096\nv_lshlrev_b32 v8, 5, v0")
    a("s_mov_b32 s82, 0")
    a("L_h0_gq:")
    for k in range(4):
        for hf in range(2):
            r = 64 + 8 * k + 4 * hf
            a(f"buffer_load_dwordx4 v[{r}:{r+3}], v8, s[40:43], s{6 + (k >> 1)} offen offset:{2048*(k & 1) + 16*hf} sc1")
    a("s_waitcnt vmcnt(0)")
    tag_check([65 + 2 * i for i in range(16)], 26, 27, "L_h0_gq_retry")
    stamp(4)
    for r in range(4):
        a(f"v_add_f32 v{64+2*r}, v{64+2*r}, v{72+2*r}\nv_add_f32 v{64+2*r}, v{64+2*r}, v{80+2*r}\nv_add_f32 v{64+2*r}, v{64+2*r}, v{88+2*r}")
    a("v_cvt_pk_bf16_f32 v64, v64, v66\nv_cvt_pk_bf16_f32 v65, v68, v70")
    a("v_lshlrev_b32 v8, 3, v0")
    a(f"ds_write_b64 v8, v[64:65] offset:{QL}")
    a("v_mov_b32 v10, 1\ns_waitcnt lgkmcnt(0)")
    a(f"ds_write_b32 v{VZ}, v10 offset:{FLG}")
    dst(2); dst(3, neg=True)
    if dbg:
        a(f"s_lshl_b32 s6, s2, 9\ns_add_u32 s6, s6, {DBGO:#x}")
        a("buffer_store_dwordx2 v[64:65], v8, s[40:43], s6 offen")
    stamp(5)
    a("s_branch L_hjob")
    a("L_h0_gq_retry:")
    spin_guard("L_h0_gq", qsleep)

    a("L_hwait:")
    if ffn_early: spin_lds(16, 1, 26, VZ)
    else: spin_lds(0, 1, 26, VZ)
    a("L_hjob:")
    a("s_cmp_lt_u32 s5, 9\ns_cbranch_scc1 L_job_wo")
    a("s_cmp_eq_u32 s5, 9\ns_cbranch_scc1 L_job_fin")
    a("s_cmp_eq_u32 s3, 0\ns_cbranch_scc1 L_preB1")
    if not abl_ffn: a("s_cmp_lt_u32 s57, 72\ns_cbranch_scc1 L_job_ffn")

    a("L_preB1:")
    a("s_cmp_eq_u32 s3, 0\ns_cbranch_scc0 L_B1")
    table_lookup()
    a(f"s_mul_i32 s72, s4, {cstride}\ns_add_u32 s72, s72, {CNT+coff:#x}")
    if prog: a("s_mov_b32 s77, 0\ns_mov_b32 s78, 0")
    a(f"s_mov_b32 s73, 0")
    a(f"s_lshl_b32 s74, s67, 2\ns_sub_u32 s74, s74, {lax}")
    if touch:
        a("s_lshl_b32 s6, s4, 24")
        a("s_add_u32 s32, s10, s6\ns_addc_u32 s33, s11, 0\ns_mov_b32 s34, 0x1000000\ns_mov_b32 s35, 0x20000")
        a("s_add_u32 s36, s12, s6\ns_addc_u32 s37, s13, 0\ns_mov_b32 s38, 0x1000000\ns_mov_b32 s39, 0x20000")
        a(f"s_sub_u32 s77, s74, {4*touch}\ns_mov_b32 s82, 0")
        a("L_touchw:")
        a(f"ds_read_b32 v96, v{VZ} offset:{TK}\ns_waitcnt lgkmcnt(0)\nv_readfirstlane_b32 s75, v96")
        a("s_cmp_ge_i32 s75, s77\ns_cbranch_scc1 L_touch")
        spin_guard("L_touchw", 8)
        a("L_touch:")
        a(f"v_lshlrev_b32 v97, 20, v0\nv_add_u32 v97, {(1024 - P) * 16384:#x}, v97\ns_mov_b64 exec, 7")
        a("buffer_load_dword v98, v97, s[32:35], 0 offen nt\nbuffer_load_dword v99, v97, s[36:39], 0 offen nt\ns_mov_b64 exec, -1\ns_waitcnt vmcnt(0)")
    a("s_mov_b32 s82, 0")
    a("L_disp:")
    a(f"ds_read_b32 v96, v{VZ} offset:{TK}")
    a("s_waitcnt lgkmcnt(0)")
    a("v_readfirstlane_b32 s75, v96")
    a(f"s_sub_u32 s75, s75, s74\ns_ashr_i32 s75, s75, 2\ns_add_u32 s75, s75, {1 + LA}\ns_sub_u32 s75, s75, s73")
    a("s_cmp_gt_i32 s75, 0\ns_cbranch_scc1 L_disp_go")
    spin_guard("L_disp", dsleep)
    a("L_disp_go:")
    a("s_min_u32 s75, s75, 4")
    if prog: stamp(4)
    a("v_mov_b32 v96, s75\ns_mov_b64 exec, 1")
    a(f"buffer_atomic_add v96, v{VZ}, s[40:43], s72 offen sc0 sc1")
    a("s_waitcnt vmcnt(0)")
    if prog: a("s_memrealtime s[84:85]\ns_waitcnt lgkmcnt(0)\ns_sub_u32 s6, s84, s96\ns_add_u32 s77, s77, s6\ns_add_u32 s78, s78, 1")
    a("v_readfirstlane_b32 s76, v96")
    a("s_lshl_b32 s6, 1, s75\ns_sub_u32 s6, s6, 1\ns_mov_b32 exec_lo, s6")
    a(f"v_add_u32 v96, s76, v0\nv_add_u32 v97, {1024 - P}, v96\nv_lshlrev_b32 v97, 14, v97")
    a(f"v_mov_b32 v98, 0x1000000\nv_cmp_gt_u32 vcc, {P}, v96\nv_cndmask_b32 v97, v98, v97, vcc")
    a(f"s_lshl_b32 s6, s73, 2\nv_add_u32 v98, s6, v{VL4}")
    a(f"ds_write_b32 v98, v97 offset:{DQ}")
    a("s_mov_b64 exec, -1")
    a("s_add_u32 s73, s73, s75\ns_add_u32 s76, s76, s75\ns_mov_b32 s82, 0")
    a(f"s_cmp_le_u32 s76, {P}\ns_cbranch_scc1 L_disp")
    if prog and stamps: a("s_mov_b32 s93, s73\ns_mov_b32 s94, s77\ns_mov_b32 s95, s78")
    if wodefer is True:
        a(f"v_mov_b32 v96, 1\nds_write_b32 v{VZ}, v96 offset:{FLG+12}")
        a("s_cmp_lt_u32 s5, 9\ns_cbranch_scc1 L_wo_loads")
    if wodefer == "seen":
        a("s_cmp_lt_u32 s5, 9\ns_cbranch_scc1 L_wo_wait")
    if dynwo:
        assert wodefer == "post"
        a("s_mov_b32 s55, 15")
        a("s_cmp_eq_u32 s5, 9\ns_cbranch_scc0 L_role_get\ns_cmp_lt_u32 s4, 9\ns_cbranch_scc1 L_role_put")
        a("L_role_get:")
        a("v_mov_b32 v96, 1\ns_mov_b64 exec, 1")
        a(f"buffer_atomic_add v96, v{VZ}, s[40:43], s72 offen offset:256 sc0 sc1")
        a("s_waitcnt vmcnt(0)\nv_readfirstlane_b32 s6, v96\ns_mov_b64 exec, -1")
        a("s_cmp_lt_u32 s6, 9\ns_cselect_b32 s55, s6, 15")
        a("L_role_put:")
        a(f"v_mov_b32 v96, s55\nds_write_b32 v{VZ}, v96 offset:{FLG+20}")
    a("L_B1:")
    srd(48, 26, 1152)
    a("v_lshrrev_b32 v88, 4, v0\nv_and_b32 v89, 15, v0")
    a("v_mul_u32_u24 v94, 1152, v88\nv_lshlrev_b32 v90, 4, v89\nv_add_u32 v90, v94, v90")
    a("v_bfe_u32 v91, v0, 3, 1\nv_lshlrev_b32 v91, 3, v91\nv_add3_u32 v91, v94, v91, s91x".replace("s91x", "v91") if False else "v_bfe_u32 v91, v0, 3, 1\nv_lshlrev_b32 v91, 3, v91\nv_add_u32 v91, v94, v91\nv_add_u32 v91, 1024, v91")
    a(f"v_lshlrev_b32 v92, 2, v{VR8}")
    a("v_lshlrev_b32 v93, 3, v89\nv_lshlrev_b32 v94, 1, v88\nv_add_u32 v93, v93, v94\ns_lshl_b32 s61, s4, 7")
    stamp(6)
    a("s_waitcnt lgkmcnt(0)\ns_barrier")
    if dynwo:
        a(f"ds_read_b32 v95, v{VZ} offset:{FLG+20}\ns_waitcnt lgkmcnt(0)\nv_readfirstlane_b32 s55, v95")
    else:
        a("s_mov_b32 s55, s5")
    a("s_cmp_lt_u32 s55, 9\ns_cbranch_scc1 L_wo_post")
    a("s_cmp_eq_u32 s5, 9\ns_cbranch_scc0 L_exit")
    a("s_cmp_lt_u32 s4, 9\ns_cbranch_scc0 L_exit")
    a("s_cmp_eq_u32 s3, 0\ns_cbranch_scc1 L_fin_post")
    a("s_branch L_exit")

    a("L_job_wo:")
    def wo_loads():
        srd(36, 16, 4096 * 1152)
        a(f"v_mul_u32_u24 v6, 1152, v{VR8}\nv_add_u32 v6, v6, v{VC16}")
        a("s_lshl_b32 s6, s4, 8\ns_lshl_b32 s7, s3, 5\ns_add_u32 s6, s6, s7\ns_mul_i32 s6, s6, 1152\ns_lshl_b32 s7, " + ("s55" if wodefer == "post" else "s5") + ", 7\ns_add_u32 s6, s6, s7")
        for t in range(8):
            off = (128 * (t >> 2) + 8 * (t & 3)) * 1152
            a(f"s_add_u32 s7, s6, {off}")
            if not abl_wo: a(f"buffer_load_dwordx4 a[{4*t}:{4*t+3}], v6, s[36:39], s7 offen {wpol}")
    if wodefer == "post":
        a("s_branch L_preB1")
    else:
        if wodefer:
            a("s_cmp_eq_u32 s3, 0\ns_cbranch_scc1 L_preB1")
            a("L_wo_wait:")
            spin_lds(12, 4 if wodefer == "seen" else 1, 26, VZ, sleep=8 if wodefer is True else 4)
        a("L_wo_loads:")
        wo_loads()
        if wodefer: a("s_branch L_B1")
        else: a("s_waitcnt vmcnt(0)\ns_branch L_preB1")
    a("L_wo_post:")
    if tailst: stamp(1)
    if wodefer == "post":
        a("s_barrier")
        wo_loads()
    a(f"s_mul_i32 s60, s4, {16*1152}\ns_add_u32 s60, s60, {AP:#x}")
    for i in range(4): a(f"s_add_u32 s{64+i}, s60, {4608*i}")
    a("s_lshl_b32 s7, s3, 8")
    for i in range(4): a(f"s_add_u32 s{68+i}, s{64+i}, s7")
    a("s_mov_b32 s82, 0")
    if mpoll:
        for i in range(4): a(f"s_mov_b64 s[{72+2*i}:{73+2*i}], -1")
    a("L_wo_g:")
    for i in range(4):
        if mpoll: a(f"s_cmp_eq_u64 s[{72+2*i}:{73+2*i}], 0\ns_cbranch_scc1 L_wo_sk{i}\ns_mov_b64 exec, s[{72+2*i}:{73+2*i}]")
        a(f"buffer_load_dwordx4 v[{64+4*i}:{67+4*i}], v90, s[40:43], s{68+i} offen sc1")
        a(f"buffer_load_dwordx2 v[{80+2*i}:{81+2*i}], v91, s[40:43], s{64+i} offen sc1")
        if mpoll: a(f"L_wo_sk{i}:")
    if mpoll:
        a("s_mov_b64 exec, -1\ns_waitcnt vmcnt(0)")
        for i in range(4):
            a(f"v_max3_u32 v{24+i}, v{64+4*i}, v{65+4*i}, v{66+4*i}")
        for i in range(4):
            a(f"v_max3_u32 v{24+i}, v{24+i}, v{67+4*i}, v{80+2*i}")
        for i in range(4):
            a(f"v_max_u32 v{24+i}, v{24+i}, v{81+2*i}")
        for i in range(4):
            a(f"v_cmp_eq_u32 s[{72+2*i}:{73+2*i}], -1, v{24+i}")
        a("s_or_b64 s[6:7], s[72:73], s[74:75]\ns_or_b64 vcc, s[76:77], s[78:79]\ns_or_b64 vcc, vcc, s[6:7]\ns_cbranch_scc1 L_wo_retry")
    else:
        a("s_waitcnt vmcnt(0)")
        valid_check(range(64, 88), 26, "L_wo_retry")
    if tailst: stamp(2)
    a("v_max3_f32 v20, v80, v82, v84\nv_max_f32 v20, v20, v86")
    allrow_op("v_max_f32", 20, 21)
    for i in range(4): a(f"v_sub_f32 v{24+i}, v{80+2*i}, v20")
    for i in range(4): a(f"v_exp_f32 v{24+i}, v{24+i}")
    a("v_mul_f32 v22, v24, v81\nv_fmac_f32 v22, v25, v83\nv_fmac_f32 v22, v26, v85\nv_fmac_f32 v22, v27, v87")
    allrow_op("v_add_f32", 22, 21)
    for r in range(4):
        a(f"v_mul_f32 v{28+r}, v24, v{64+r}")
        for i in range(1, 4):
            a(f"v_fmac_f32 v{28+r}, v{24+i}, v{64+4*i+r}")
    treduce(28)
    a("v_rcp_f32 v22, v22")
    a("v_mul_f32 v28, v28, v22\nv_cvt_pk_bf16_f32 v28, v28, v28")
    for t in range(8):
        off = (16 * (t & 3) + 8 * (t >> 2)) * 4
        a(f"ds_bpermute_b32 v{32+t}, v92, v28 offset:{off}")
    zero(range(20, 24))
    if trim: a(f"s_lshl_b32 s6, s3, 11\nv_add_u32 v8, s6, v{VL16}")
    a("s_waitcnt lgkmcnt(0)")
    if not trim:
        for t in range(8):
            b = 44 + 4 * (t & 1)
            buildB(b, 32 + t)
            mfma(20, f"a[{4*t}:{4*t+3}]", b)
    else:
        B = [44, 48, 52, 56]
        buildB(B[0], 32); buildB(B[1], 33)
        for t in range(8):
            if t + 2 < 8: buildB(B[(t + 2) % 4], 32 + t + 2)
            mfma(20, f"a[{4*t}:{4*t+3}]", B[t % 4])
    if not trim: a(f"s_lshl_b32 s6, s3, 11\nv_add_u32 v8, s6, v{VL16}")
    a(f"ds_write_b128 v8, v[20:23] offset:{SCR}")
    if tailst: stamp(3)
    a("s_waitcnt lgkmcnt(0)\ns_barrier")
    if tailst: stamp(4)
    a("s_cmp_eq_u32 s3, 0\ns_cbranch_scc0 L_exit")
    for w in range(4):
        a(f"ds_read_b32 v{24+2*w}, v{VFOLD} offset:{SCR + 2048*w}\nds_read_b32 v{25+2*w}, v{VFOLD} offset:{SCR + 2048*w + 640}")
    a("s_waitcnt lgkmcnt(0)")
    a("v_add_f32 v24, v24, v25\nv_add_f32 v26, v26, v27\nv_add_f32 v28, v28, v29\nv_add_f32 v30, v30, v31")
    a("v_add_f32 v24, v24, v26\nv_add_f32 v28, v28, v30\nv_add_f32 v24, v24, v28")
    a(f"s_lshl_b32 s6, s55, 4\ns_add_u32 s6, s6, s4\ns_lshl_b32 s6, s6, 8\ns_add_u32 s6, s6, {L2:#x}")
    a(f"buffer_store_dword v24, v{VL4}, s[40:43], s6 offen sc1")
    stamp(7)
    a("s_branch L_exit")
    a("L_wo_retry:")
    spin_guard("L_wo_g", 0 if trim else 1)

    a("L_job_fin:")
    a("s_cmp_lt_u32 s4, 9\ns_cbranch_scc0 L_preB1")
    a("s_cmp_eq_u32 s3, 0\ns_cbranch_scc0 L_preB1")
    srd(32, 8, 1152)
    a("v_and_b32 v10, 15, v0\nv_lshlrev_b32 v11, 3, v10\nv_lshrrev_b32 v12, 4, v0\nv_lshlrev_b32 v13, 1, v12\nv_add_u32 v11, v11, v13")
    a("s_lshl_b32 s61, s4, 7")
    a("buffer_load_ushort v15, v11, s[32:35], s61 offen")
    a("v_lshlrev_b32 v16, 9, v0\nv_add_u32 v16, 4, v16")
    a("s_mov_b32 s82, 0")
    a("L_fin_flags:")
    for i in range(4):
        a(f"s_mov_b32 s6, {QP + 32768*i:#x}\nbuffer_load_dword v{20+i}, v16, s[40:43], s6 offen sc1")
    a("s_waitcnt vmcnt(0)")
    tag_check([20, 21, 22, 23], 26, 27, "L_fin_flags_retry")
    a("s_cmp_eq_u32 s4, 0\ns_cbranch_scc0 L_fin_flags_ok")
    a(f"v_mov_b32 v20, s91\ns_mov_b32 s6, {GOFF:#x}\ns_mov_b64 exec, 1")
    a(f"buffer_store_dword v20, v{VZ}, s[40:43], s6 offen sc1\ns_mov_b64 exec, -1")
    a("L_fin_flags_ok:")
    a("v_mul_u32_u24 v12, 2304, v12\nv_lshlrev_b32 v13, 4, v10\nv_add_u32 v12, v12, v13")
    a(f"s_lshl_b32 s62, s4, 8\ns_add_u32 s62, s62, {FP:#x}")
    a(f"v_mul_u32_u24 v16, 2304, v0\nv_min_u32 v18, 7, v0\nv_mul_u32_u24 v18, 2304, v18\ns_add_u32 s63, s62, {64*2304}")
    a("s_mov_b32 s82, 0")
    if abl_ffn: a("v_mov_b32 v17, 0\nv_lshlrev_b32 v15, 16, v15\ns_branch L_preB1")
    a("L_fin_p:")
    a("buffer_load_dword v20, v16, s[40:43], s62 offen sc1\nbuffer_load_dword v21, v18, s[40:43], s63 offen sc1\ns_waitcnt vmcnt(0)")
    a("v_max_u32 v20, v20, v21\nv_cmp_eq_u32 vcc, -1, v20\ns_cmp_lg_u64 vcc, 0\ns_cbranch_scc1 L_fin_p_retry")
    a("s_mov_b32 s82, 0")
    a("L_fin_f:")
    a("s_mov_b32 s6, s62")
    for i in range(18):
        a(f"buffer_load_dwordx4 v[{48+4*i}:{51+4*i}], v12, s[40:43], s6 offen sc1")
        if i < 17: a("s_add_u32 s6, s6, 9216")
    a("s_waitcnt vmcnt(0)")
    valid_check(range(48, 120), 26, "L_fin_f_retry")
    for i in range(1, 18):
        for r in range(4):
            a(f"v_add_f32 v{48+r}, v{48+r}, v{48+4*i+r}")
    treduce(48)
    rbf(17, 48)
    a("v_lshlrev_b32 v15, 16, v15")
    a("s_branch L_preB1")
    a("L_fin_post:")
    if tailst: stamp(1)
    a(f"s_lshl_b32 s62, s4, 12\ns_add_u32 s62, s62, {L2:#x}")
    a("s_mov_b32 s82, 0")
    a("L_fin_g:")
    for i in range(4):
        a(f"buffer_load_dwordx4 v[{48+4*i}:{51+4*i}], v{VL16}, s[40:43], s62 offen offset:{1024*i} sc1")
    a("s_waitcnt vmcnt(0)")
    valid_check(range(48, 64), 26, "L_fin_g_retry")
    if tailst: stamp(2)
    for r in range(4):
        a(f"v_add_f32 v{48+r}, v{48+r}, v{52+r}\nv_add_f32 v{56+r}, v{56+r}, v{60+r}\nv_add_f32 v{48+r}, v{48+r}, v{56+r}")
    treduce(48)
    rbf(48, 48)
    a("v_add_f32 v48, v15, v48")
    rbf(48, 48)
    a("v_add_f32 v48, v48, v17\nv_cvt_pk_bf16_f32 v48, v48, v48")
    a(f"buffer_store_short v48, v93, s[48:51], s61 offen {outpol}")
    dst(6)
    stamp(7)
    a("s_branch L_exit")
    a("L_fin_flags_retry:")
    spin_guard("L_fin_flags", 32)
    a("L_fin_p_retry:")
    spin_guard("L_fin_p", 64)
    a("L_fin_f_retry:")
    spin_guard("L_fin_f", 16)
    a("L_fin_g_retry:")
    spin_guard("L_fin_g", 0 if trim else 1)

    a("L_job_ffn:")
    srd(32, 20, 576 * 9216)
    srd(36, 22, 576 * 9216)
    srd(48, 24, 4608 * 1152)
    a("s_sub_u32 s58, s3, 1")
    a(f"v_mul_u32_u24 v6, 9216, v{VR8}\nv_add_u32 v6, v6, v{VC16}")
    a(f"v_mul_u32_u24 v7, 1152, v{VR8}\nv_add_u32 v7, v7, v{VC16}")
    a(f"s_mul_i32 s60, s58, 192\ns_lshl_b32 s6, s60, 2\nv_lshlrev_b32 v10, 2, v{VR8}\nv_add_u32 v10, s6, v10")
    a("s_mul_i32 s62, s60, 9216\ns_lshl_b32 s6, s57, 7\ns_add_u32 s62, s62, s6")
    a("s_mul_i32 s63, s57, 73728\ns_mul_i32 s6, s58, 384\ns_add_u32 s63, s63, s6")
    if ffn_contig:
        a(f"v_mov_b32 v6, v{VL16}\nv_mov_b32 v7, v{VL16}")
        a("s_mul_i32 s62, s57, 73728\ns_mul_i32 s6, s58, 24576\ns_add_u32 s62, s62, s6\ns_mov_b32 s63, s62")
    loads = []
    for t in range(24): loads += [("g", t), ("u", t)]
    for t in range(8): loads += [("d", t, 0), ("d", t, 1), ("d", t, 2)]
    R = W
    def issue(i):
        ld = loads[i]; r = 4 * (i % R)
        if ld[0] == "g":
            a(f"buffer_load_dwordx4 a[{r}:{r+3}], v6, s[32:35], s62 offen {wpol}")
        elif ld[0] == "u":
            a(f"buffer_load_dwordx4 a[{r}:{r+3}], v6, s[36:39], s62 offen {wpol}\ns_add_u32 s62, s62, {1024 if ffn_contig else 8*9216}")
        else:
            a(f"buffer_load_dwordx4 a[{r}:{r+3}], v7, s[48:51], s63 offen offset:{(1024 if ffn_contig else 128)*ld[2]} {wpol}")
            if ld[2] == 2: a(f"s_add_u32 s63, s63, {3072 if ffn_contig else 8*1152}")
    for i in range(W): issue(i)
    zero(range(20, 40))
    for i, ld in enumerate(loads):
        if ld[0] == "g":
            t = ld[1]
            if t % 4 == 0:
                for u in range(4): a(f"ds_read_b32 v{48+u}, v10 offset:{XS + 32*(t+u)}")
                a("s_waitcnt lgkmcnt(0)")
            buildB(44, 48 + (t % 4))
        if ld[0] == "d" and ld[1] == 0 and ld[2] == 0:
            a(f"s_lshl_b32 s6, s58, 11\nv_add_u32 v8, s6, v{VL16}")
            a(f"ds_write_b128 v8, v[20:23] offset:{SCR}\nds_write_b128 v8, v[24:27] offset:{SCR+1024}")
            a("v_mov_b32 v11, 1\ns_waitcnt lgkmcnt(0)")
            a(f"s_mov_b64 exec, 1\nds_add_u32 v{VZ}, v11 offset:{FLG+8}\ns_mov_b64 exec, -1")
            spin_lds(8, 3, 26, VZ)
            for w in range(3):
                for m in range(2):
                    a(f"ds_read_b32 v{48+4*w+2*m}, v{VFOLD} offset:{SCR+2048*w+1024*m}\nds_read_b32 v{49+4*w+2*m}, v{VFOLD} offset:{SCR+2048*w+1024*m+640}")
            a("s_waitcnt lgkmcnt(0)")
            a("v_add_f32 v48, v48, v49\nv_add_f32 v52, v52, v53\nv_add_f32 v56, v56, v57\nv_add_f32 v48, v48, v52\nv_add_f32 v48, v48, v56")
            a("v_add_f32 v50, v50, v51\nv_add_f32 v54, v54, v55\nv_add_f32 v58, v58, v59\nv_add_f32 v50, v50, v54\nv_add_f32 v50, v50, v58")
            rbf(48, 48); rbf(50, 50)
            a("v_mul_f32 v52, v48, v48\nv_mul_f32 v52, v52, v48\nv_mul_f32 v52, 0x3d372713, v52\nv_add_f32 v52, v48, v52")
            a("v_mul_f32 v52, 0x3f4c422a, v52\nv_mul_f32 v52, 0xc038aa3b, v52\nv_exp_f32 v52, v52")
            a("v_add_f32 v52, 1.0, v52\nv_rcp_f32 v52, v52")
            a("v_mul_f32 v52, v48, v52")
            rbf(52, 52)
            a("v_mul_f32 v52, v52, v50\nv_cvt_pk_bf16_f32 v52, v52, v52")
            a(f"s_lshl_b32 s6, s58, 8\nv_add_u32 v8, s6, v{VL4}")
            a(f"ds_write_b32 v8, v52 offset:{HS}")
            a(f"v_lshlrev_b32 v8, 2, v{VR8}\nv_add_u32 v8, s6, v8")
            for t in range(8): a(f"ds_read_b32 v{64+t}, v8 offset:{HS + 32*t}")
            a("s_waitcnt lgkmcnt(0)")
        if ld[0] == "d" and ld[2] == 0:
            buildB(44, 64 + ld[1])
        a(f"s_waitcnt vmcnt({min(W, len(loads) - i) - 1})")
        r = 4 * (i % R)
        acc = 20 if ld[0] == "g" else 24 if ld[0] == "u" else 28 + 4 * ld[2]
        mfma(acc, f"a[{r}:{r+3}]", 44)
        if i + W < len(loads): issue(i + W)
    a(f"s_mul_i32 s6, s58, 3072\nv_add_u32 v8, s6, v{VL16}\nv_add_u32 v9, s6, v{VFOLD}")
    for u in range(3):
        a(f"ds_write_b128 v8, v[{28+4*u}:{31+4*u}] offset:{SCR2 + 1024*u}")
    for u in range(3):
        a(f"ds_read_b32 v{48+2*u}, v9 offset:{SCR2 + 1024*u}\nds_read_b32 v{49+2*u}, v9 offset:{SCR2 + 1024*u + 640}")
    a("s_waitcnt lgkmcnt(0)")
    a(f"s_mul_i32 s6, s57, 2304\ns_mul_i32 s7, s58, 768\ns_add_u32 s6, s6, s7\ns_add_u32 s6, s6, {FP:#x}")
    for u in range(3):
        a(f"v_add_f32 v{48+2*u}, v{48+2*u}, v{49+2*u}")
        a(f"buffer_store_dword v{48+2*u}, v{VL4}, s[40:43], s6 offen offset:{256*u} sc1")
    a("s_branch L_preB1")

    a("L_stream:")
    a("s_lshl_b32 s6, s4, 24")
    a("s_add_u32 s32, s10, s6\ns_addc_u32 s33, s11, 0\ns_mov_b32 s34, 0x1000000\ns_mov_b32 s35, 0x20000")
    a("s_add_u32 s36, s12, s6\ns_addc_u32 s37, s13, 0\ns_mov_b32 s38, 0x1000000\ns_mov_b32 s39, 0x20000")
    a("s_sub_u32 s58, s3, 4")
    a("s_barrier")
    table_lookup()
    a("s_lshl_b32 s61, s62, 14")
    a("s_lshl_b32 s60, s58, 12\ns_add_u32 s60, s60, s61")
    a("s_lshl_b32 s67, s67, 2")
    a("v_lshlrev_b32 v1, 4, v0")
    STR = 16384
    def kload(s, so):
        for j in range(4):
            r = 64 + 16 * s + 4 * j
            a(f"buffer_load_dwordx4 v[{r}:{r+3}], v1, s[32:35], {so} offen offset:{1024*j} {kvpol}")
    def vload(s, so):
        for j in range(4):
            r = 16 * s + 4 * j
            a(f"buffer_load_dwordx4 a[{r}:{r+3}], v1, s[36:39], {so} offen offset:{1024*j} {kvpol}")
    if ipace is not None:
        a("v_mov_b32 v19, 0\ns_mov_b32 s63, 0")
        for s in range(NS):
            if s:
                a(f"s_cmp_eq_u32 s63, 1\ns_cbranch_scc1 L_pk_{s}")
                a(f"s_waitcnt vmcnt({ipace})")
                a(f"ds_read_b32 v62, v19 offset:{FLG}\ns_waitcnt lgkmcnt(0)\nv_readfirstlane_b32 s63, v62")
                a(f"L_pk_{s}:")
            kload(s, "s60")
            if s:
                a(f"s_cmp_eq_u32 s63, 1\ns_cbranch_scc1 L_pv_{s}")
                a(f"s_waitcnt vmcnt({ipace})")
                a(f"L_pv_{s}:")
            vload(s, "s60")
            a(f"s_mov_b32 s{70+s}, s60\ns_add_u32 s60, s60, {STR}")
    elif not vlag:
        for s in range(NS):
            if pace and s: a(f"s_waitcnt vmcnt({pace})")
            kload(s, "s60")
            if pace and s: a(f"s_waitcnt vmcnt({pace})")
            vload(s, "s60")
            a(f"s_mov_b32 s{70+s}, s60\ns_add_u32 s60, s60, {STR}")
    else:
        for s in range(NS): a(f"s_add_u32 s{70+s}, s60, {STR*s}")
        for s in range(NS):
            kload(s, f"s{70+s}")
            if s: vload(s - 1, f"s{69+s}")
        vload(NS - 1, f"s{69+NS}")
    stamp(1)
    a("v_mov_b32 v19, 0")
    spin_lds(0, 1, 62, 19)
    stamp(2)
    a("v_and_b32 v62, 15, v0\nv_lshlrev_b32 v62, 4, v62")
    a(f"ds_read_b128 v[6:9], v62 offset:{QL}\nds_read_b128 v[10:13], v62 offset:{QL+256}")
    a("v_mov_b32 v14, 0xf149f2ca\nv_mov_b32 v16, 0xf149f2ca\nv_mov_b32 v17, 0")
    zero(range(20, 24))
    a("s_mov_b32 s64, 0x1000000")
    a(f"s_mov_b32 s66, {L}\ns_mov_b32 s65, 0")
    a("s_waitcnt lgkmcnt(0)")
    if prog:
        a("s_lshl_b32 s80, s58, 7")
        a(f"v_lshlrev_b32 v62, 2, v0\nv_add_u32 v62, s80, v62\nv_mov_b32 v63, 0\ns_mov_b64 exec, 0xffffffff\nds_write_b32 v62, v63 offset:{PRG}\ns_mov_b64 exec, -1\ns_waitcnt lgkmcnt(0)")
    a("L_loop:")
    S0, S1, Q0, Q1 = 24, 28, 6, 10
    for s in range(NS):
        kb = 64 + 16 * s; vb = 16 * s; rs = (s + L) % NS
        a(f"s_cmp_ge_u32 s{70+s}, s64\ns_cbranch_scc1 L_loop_end")
        if prog and s == 0:
            a("s_memrealtime s[84:85]\ns_waitcnt lgkmcnt(0)\nv_mov_b32 v62, s80\nv_mov_b32 v63, s84")
            a(f"ds_write_b32 v62, v63 offset:{PRG}\ns_add_u32 s80, s80, 4")
        a(f"s_cmp_ge_u32 s65, s64\ns_cbranch_scc1 L_notk_{s}")
        if s < NS - L: a(f"s_cmp_lt_u32 s66, {NS}\ns_cbranch_scc1 L_notk_{s}")
        a(f"v_mov_b32 v62, 0\nv_mov_b32 v63, 1\ns_mov_b64 exec, 1\nds_add_rtn_u32 v63, v62, v63 offset:{TK}\ns_mov_b64 exec, -1")
        a(f"L_notk_{s}:")
        if exact0 and s < NS - L: a(f"s_cmp_lt_u32 s66, {NS}\ns_cbranch_scc1 L_kw0_{s}")
        a(f"s_waitcnt vmcnt({8*L-4})")
        if exact0 and s < NS - L: a(f"L_kwb_{s}:")
        for e in range(4):
            for j in range(4):
                for (S, Q) in ((S0, Q0), (S1, Q1)):
                    if e == 0: a(f"v_dot2_f32_bf16 v{S+j}, v{kb+4*j}, v{Q}, 0")
                    else: a(f"v_dot2c_f32_bf16 v{S+j}, v{kb+4*j+e}, v{Q+e}")
        if s < NS - L: a(f"s_cmp_lt_u32 s66, {NS}\ns_cbranch_scc1 L_skipK_{s}")
        a(f"s_cmp_ge_u32 s65, s64\ns_cbranch_scc1 L_back_{s}")
        a("s_waitcnt lgkmcnt(0)\nv_readfirstlane_b32 s6, v63")
        a(f"s_cmp_lt_u32 s6, s67\ns_cbranch_scc0 L_dyn_{s}")
        a("s_lshl_b32 s65, s6, 12\ns_add_u32 s65, s65, s61")
        a(f"L_back_{s}:")
        a(f"s_mov_b32 s{70+rs}, s65")
        kload(rs, "s65")
        if s < NS - L: a(f"L_skipK_{s}:")
        if vlag:
            ps = (s + L - 1) % NS
            if s < NS - L + 1: a(f"s_cmp_lt_u32 s66, {NS+1}\ns_cbranch_scc1 L_skipV_{s}")
            vload(ps, f"s{70+ps}")
            if s < NS - L + 1: a(f"L_skipV_{s}:")
        for j in range(4): a(f"v_add_f32_dpp v{S0+j}, v{S0+j}, v{S0+j} row_ror:8 row_mask:0xf bank_mask:0x3")
        for j in range(4): a(f"v_add_f32_dpp v{S0+j}, v{S1+j}, v{S1+j} row_ror:8 row_mask:0xf bank_mask:0xc")
        for m in ("row_half_mirror", "quad_perm:[1,0,3,2]", "quad_perm:[2,3,0,1]"):
            for j in range(4): a(f"v_add_f32_dpp v{S0+j}, v{S0+j}, v{S0+j} {m} row_mask:0xf bank_mask:0xf")
        a("v_cvt_pk_bf16_f32 v52, v24, v25\nv_cvt_pk_bf16_f32 v53, v26, v27")
        a("v_lshlrev_b32 v48, 16, v52\nv_and_b32 v49, s90, v52\nv_lshlrev_b32 v50, 16, v53\nv_and_b32 v51, s90, v53")
        for j in range(4): a(f"v_mul_f32 v{48+j}, s89, v{48+j}")
        a("v_cvt_pk_bf16_f32 v52, v48, v49\nv_cvt_pk_bf16_f32 v53, v50, v51")
        a("v_lshlrev_b32 v54, 16, v52\nv_and_b32 v55, s90, v52\nv_lshlrev_b32 v56, 16, v53\nv_and_b32 v57, s90, v53")
        a("v_max3_f32 v19, v54, v55, v56\nv_max3_f32 v19, v19, v57, v14")
        a("v_mov_b32 v62, v19\nv_permlane16_swap_b32 v19, v62\nv_max_f32 v19, v19, v62")
        a("v_mov_b32 v62, v19\nv_permlane32_swap_b32 v19, v62\nv_max_f32 v14, v19, v62")
        a("v_mul_f32 v15, s88, v14\nv_sub_f32 v18, v16, v15")
        for j in range(4): a(f"v_fma_f32 v{54+j}, v{54+j}, s88, -v15")
        a("v_exp_f32 v18, v18")
        for j in range(4): a(f"v_exp_f32 v{54+j}, v{54+j}")
        a("v_mov_b32 v16, v15")
        for j in range(4): a(f"v_cvt_pk_bf16_f32 v{58+j}, v{54+j}, v{54+j}")
        a("v_add_f32 v19, v54, v55\nv_add_f32 v62, v56, v57")
        for r in range(4): a(f"v_mul_f32 v{20+r}, v{20+r}, v18")
        a("v_add_f32 v19, v19, v62")
        for j in range(4): buildB(32 + 4 * j, 58 + j)
        a("v_fma_f32 v17, v17, v18, v19")
        if exact0 and s < NS - L: a(f"s_cmp_lt_u32 s66, {NS}\ns_cbranch_scc1 L_vw0_{s}")
        a(f"s_waitcnt vmcnt({8*(L-1) if vlag else 8*L-4})")
        if exact0 and s < NS - L: a(f"L_vwb_{s}:")
        for j in range(4): mfma(20, f"a[{vb+4*j}:{vb+4*j+3}]", 32 + 4 * j)
        if not vlag:
            if s < NS - L: a(f"s_cmp_lt_u32 s66, {NS}\ns_cbranch_scc1 L_skipV_{s}")
            vload(rs, "s65")
            if s < NS - L: a(f"L_skipV_{s}:")
        a("s_add_u32 s66, s66, 1")
    a("s_branch L_loop")
    if exact0:
        for s in range(NS - L):
            a(f"L_kw0_{s}:\ns_waitcnt vmcnt({8*(NS-1-s)+4})\ns_branch L_kwb_{s}")
            a(f"L_vw0_{s}:\ns_waitcnt vmcnt({8*(NS-1-s)})\ns_branch L_vwb_{s}")
    for s in range(NS):
        a(f"L_dyn_{s}:")
        a("s_sub_u32 s7, s6, s67\ns_and_b32 s7, s7, -4\nv_mov_b32 v62, s7\ns_and_b32 s6, s6, 3\ns_lshl_b32 s59, s6, 12\ns_mov_b32 s82, 0")
        a(f"L_dynsp_{s}:")
        a(f"ds_read_b32 v63, v62 offset:{DQ}\ns_waitcnt lgkmcnt(0)\nv_readfirstlane_b32 s65, v63")
        a(f"s_cmp_eq_u32 s65, -1\ns_cbranch_scc1 L_dynw_{s}")
        if wodefer == "seen":
            a(f"s_add_u32 s65, s65, s59\ns_cmp_ge_u32 s65, s64\ns_cbranch_scc0 L_back_{s}")
            a(f"v_mov_b32 v62, 0\nv_mov_b32 v63, 1\ns_mov_b64 exec, 1\nds_add_u32 v62, v63 offset:{FLG+12}\ns_mov_b64 exec, -1\ns_branch L_back_{s}")
        else:
            a(f"s_add_u32 s65, s65, s59\ns_branch L_back_{s}")
        a(f"L_dynw_{s}:")
        a(f"s_sleep 1\ns_add_u32 s82, s82, 1\ns_cmp_lt_u32 s82, {SPIN_LIMIT:#x}\ns_cbranch_scc1 L_dynsp_{s}\ns_branch L_exit")
    a("L_loop_end:")
    if dstamp:
        a("s_waitcnt vmcnt(0)")
        dst(4); dst(5, neg=True)
    stamp(3)
    if prog:
        a(f"s_lshl_b32 s6, s58, 7\nv_lshlrev_b32 v62, 2, v0\nv_add_u32 v63, s6, v62\nds_read_b32 v63, v63 offset:{PRG}\ns_waitcnt lgkmcnt(0)")
        a(f"s_lshl_b32 s6, s2, 2\ns_add_u32 s6, s6, s58\ns_lshl_b32 s6, s6, 7\ns_add_u32 s6, s6, {DBGO:#x}\ns_mov_b64 exec, 0xffffffff")
        a("buffer_store_dword v63, v62, s[40:43], s6 offen\ns_mov_b64 exec, -1")
    allrow_op("v_add_f32", 17, 62)
    a(f"s_lshl_b32 s6, s58, 10\nv_add_u32 v62, s6, v1")
    a(f"ds_write_b128 v62, v[20:23] offset:{ACC}")
    a("v_bfe_u32 v63, v0, 3, 1\nv_lshlrev_b32 v63, 3, v63\ns_lshl_b32 s6, s58, 4\nv_add_u32 v62, s6, v63")
    a(f"s_mov_b64 exec, 0x101\nds_write_b64 v62, v[16:17] offset:{MLL}\ns_mov_b64 exec, -1")
    a("s_waitcnt lgkmcnt(0)\ns_barrier")
    a("s_cmp_eq_u32 s58, 0\ns_cbranch_scc0 L_exit")
    stamp(4)
    if dynwo: a(f"v_mov_b32 v57, 0\nds_read_b32 v56, v57 offset:{FLG+20}")
    for w in range(4):
        a(f"ds_read_b128 v[{32+4*w}:{35+4*w}], v1 offset:{ACC + 1024*w}")
        a(f"ds_read_b64 v[{48+2*w}:{49+2*w}], v63 offset:{MLL + 16*w}")
    a("s_waitcnt lgkmcnt(0)")
    a("v_max3_f32 v16, v48, v50, v52\nv_max_f32 v16, v16, v54")
    for w in range(4): a(f"v_sub_f32 v{24+w}, v{48+2*w}, v16")
    for w in range(4): a(f"v_exp_f32 v{24+w}, v{24+w}")
    a("v_mul_f32 v17, v24, v49\nv_fmac_f32 v17, v25, v51\nv_fmac_f32 v17, v26, v53\nv_fmac_f32 v17, v27, v55")
    for r in range(4):
        a(f"v_mul_f32 v{20+r}, v24, v{32+r}")
        for w in range(1, 4): a(f"v_fmac_f32 v{20+r}, v{24+w}, v{32+4*w+r}")
    a(f"s_mul_i32 s6, s56, 1152\ns_add_u32 s6, s6, {AP:#x}")
    a("buffer_store_dwordx4 v[20:23], v1, s[40:43], s6 offen sc1")
    a("s_mov_b64 exec, 0x101\nbuffer_store_dwordx2 v[16:17], v63, s[40:43], s6 offen offset:1024 sc1\ns_mov_b64 exec, -1")
    stamp(5)
    if wodefer == "post":
        if dynwo: a("v_readfirstlane_b32 s55, v56\ns_cmp_lt_u32 s55, 9\ns_cbranch_scc0 L_exit\ns_barrier")
        else: a("s_cmp_lt_u32 s5, 9\ns_cbranch_scc0 L_exit\ns_barrier")

    a("L_exit:")
    if stamps:
        a("s_memrealtime s[84:85]\ns_waitcnt lgkmcnt(0) vmcnt(0)")
        a("s_getreg_b32 s6, hwreg(HW_REG_XCC_ID)")
        a(f"s_lshl_b32 s7, s2, 3\ns_add_u32 s7, s7, s3\ns_mul_i32 s7, s7, 48\ns_add_u32 s7, s7, {STAMP:#x}")
        for k in range(8): a(f"v_mov_b32 v{100+k}, s{92+k}")
        a("v_mov_b32 v108, s84\nv_mov_b32 v109, s6\nv_mov_b32 v110, 0\nv_mov_b32 v111, 0\nv_mov_b32 v99, 0")
        a("s_mov_b64 exec, 1")
        a("buffer_store_dwordx4 v[100:103], v99, s[40:43], s7 offen\nbuffer_store_dwordx4 v[104:107], v99, s[40:43], s7 offen offset:16\nbuffer_store_dwordx4 v[108:111], v99, s[40:43], s7 offen offset:32")
    a("L_end:")
    a("s_endpgm")
    hdr = header(256, 512, LDS_SIZE, comments=open("parallel_sum__gqa_block_cached__glu_gated_geglu__decode.s.ref").read().split("; Override")[0].strip().split("\n"))
    accum = max(128, 64 + 16 * NS)
    assert accum + max(16 * NS, 72) <= 256
    return a.text(hdr, footer(256, 102, accum), verbose=True)

if __name__ == "__main__":
    kw = {}
    for arg in sys.argv[2:]:
        k, v = arg.split("="); kw[k] = eval(v)
    open(sys.argv[1], "w").write(gen(**kw))
```

```python
import sys
from asmlib import *

QP = 0x0
AP = 0x20000
L2 = 0x68000
FP = 0x71000
GOFF = 0x99800
CNT = 0x9A000
WS_SIZE = 0xC0000
STAMP = 0x100000
DBGO = 0x120000
XS = 0x0; QL = 0x900; FLG = 0xB00; MLL = 0xB40; ACC = 0xC00; SCR = 0x2000; HS = 0x4000; SCR2 = 0x4400; DQ = 0x6800; TK = 0x6C00; PRG = 0x6C40; LDS_SIZE = 0x6E40
SPIN_LIMIT = 0x100000
VL4, VL16, VFOLD, VC16, VR8, VZ = 120, 121, 122, 123, 124, 125

DESC = r'''
; ---------------------------------------------------------------------------------------------------------------
;  * wave 0: layernorm + a 144x64 slice of x@wq, the 16 slices of a head are exchanged as {value, tag} granules
; ---------------------------------------------------------------------------------------------------------------'''

def rounds_table(nf_rounds=6.9, wo_rounds=1.0):
    tabs = {}
    for grp, nf in (("lo", 5), ("hi", 4)):
        extra = [wo_rounds if c < 9 else (0.5 if c == 9 else (nf_rounds if (10 <= c < 10 + nf) else 0.0)) for c in range(16)]
        avg = (1024 + sum(extra)) / 16
        n = [int(avg - e) for e in extra]
        rem = 1024 - sum(n)
        order = sorted(range(16), key=lambda c: -((avg - extra[c]) - n[c]))
        for c in order[:rem]: n[c] += 1
        assert sum(n) == 1024
        tabs[grp] = n
    return tabs

def gen(NS=6, L=2, P=128, LA=0, stamps=False, pace=None, kvpol="nt", wpol="nt", W=24, dbg=False, nf_rounds=6.9, abl_ffn=False, abl_wo=False, ffn_contig=False, prog=False, outpol='', tailst=False, hmix=0, hxor=0, mpoll=True, wodefer='post', cstride=1024, coff=0, fperm=3, vlag=False, ackwait=True, qsleep=1, dstamp=False, touch=0, trim=True, exact0=False, ipace=None, wo_extra=None, dsleep=2, lax=0, ffn_early=False, dynwo=True, hpol='sc1', fpipe=False):
    a = Asm()
    def stamp(k):
        if stamps:
            a(f"s_memrealtime s[84:85]\ns_waitcnt lgkmcnt(0)\ns_mov_b32 s{92+k}, s84")
    def dst(idx, neg=False):
        if not dstamp: return
        a("s_memrealtime s[84:85]\ns_waitcnt lgkmcnt(0)")
        if neg: a("s_not_b32 s84, s84")
        a("s_mov_b32 s44, s28\ns_mov_b32 s45, s29\ns_mov_b32 s46, 256\ns_mov_b32 s47, 0x20000")
        a(f"s_mov_b64 s[86:87], exec\ns_mov_b64 exec, 1\nv_mov_b32 v18, s84\nv_mov_b32 v19, {4*idx}")
        a("buffer_atomic_umax v18, v19, s[44:47], 0 offen sc1\ns_mov_b64 exec, s[86:87]")
    def srd(base, plo, size):
        a(f"s_mov_b32 s{base}, s{plo}\ns_mov_b32 s{base+1}, s{plo+1}\ns_mov_b32 s{base+2}, {size:#x}\ns_mov_b32 s{base+3}, 0x20000")
    uid = [0]
    def lab(n):
        uid[0] += 1; return f"L_{n}_{uid[0]}"
    def spin_lds(flagoff, want, vtmp, vzero, sleep=1):
        L = lab("sp"); D = lab("spd")
        a("s_mov_b32 s82, 0")
        a(f"{L}:")
        a(f"ds_read_b32 v{vtmp}, v{vzero} offset:{FLG+flagoff}")
        a("s_waitcnt lgkmcnt(0)")
        a(f"v_readfirstlane_b32 s6, v{vtmp}")
        a(f"s_cmp_eq_u32 s6, {want}\ns_cbranch_scc1 {D}")
        a(f"s_sleep {sleep}\ns_add_u32 s82, s82, 1\ns_cmp_lt_u32 s82, {SPIN_LIMIT:#x}\ns_cbranch_scc1 {L}\ns_branch L_exit")
        a(f"{D}:")
    def allrow_op(op, v, t):
        a(f"v_mov_b32 v{t}, v{v}\nv_permlane16_swap_b32 v{v}, v{t}\n{op} v{v}, v{v}, v{t}")
        a(f"v_mov_b32 v{t}, v{v}\nv_permlane32_swap_b32 v{v}, v{t}\n{op} v{v}, v{v}, v{t}")
    def wave_sum(v, t):
        for r in (8, 4, 2, 1):
            a(f"v_add_f32_dpp v{v}, v{v}, v{v} row_ror:{r} row_mask:0xf bank_mask:0xf")
        allrow_op("v_add_f32", v, t)
    def rbf(dst, src):
        a(f"v_cvt_pk_bf16_f32 v{dst}, v{src}, v{src}\nv_and_b32 v{dst}, s90, v{dst}")
    def treduce(x):
        a(f"v_permlane16_swap_b32 v{x}, v{x+1}\nv_permlane16_swap_b32 v{x+2}, v{x+3}")
        a(f"v_add_f32 v{x}, v{x}, v{x+1}\nv_add_f32 v{x+2}, v{x+2}, v{x+3}")
        a(f"v_permlane32_swap_b32 v{x}, v{x+2}\nv_add_f32 v{x}, v{x}, v{x+2}")
    def buildB(dst, src):
        for q in range(4): a(f"v_and_b32 v{dst+q}, v{src}, v{2+q}")
    def valid_check(regs, t, retry_label):
        r = list(regs)
        a(f"v_max3_u32 v{t}, v{r[0]}, v{r[1]}, v{r[2]}")
        r = r[3:]
        while len(r) >= 2:
            a(f"v_max3_u32 v{t}, v{t}, v{r[0]}, v{r[1]}"); r = r[2:]
        if r: a(f"v_max_u32 v{t}, v{t}, v{r[0]}")
        a(f"v_cmp_eq_u32 vcc, -1, v{t}\ns_cmp_lg_u64 vcc, 0\ns_cbranch_scc1 {retry_label}")
    def tag_check(regs, t0, t1, retry_label):
        r = list(regs)
        a(f"v_min3_u32 v{t0}, v{r[0]}, v{r[1]}, v{r[2]}\nv_max3_u32 v{t1}, v{r[0]}, v{r[1]}, v{r[2]}")
        r = r[3:]
        while len(r) >= 2:
            a(f"v_min3_u32 v{t0}, v{t0}, v{r[0]}, v{r[1]}\nv_max3_u32 v{t1}, v{t1}, v{r[0]}, v{r[1]}"); r = r[2:]
        if r: a(f"v_min_u32 v{t0}, v{t0}, v{r[0]}\nv_max_u32 v{t1}, v{t1}, v{r[0]}")
        a(f"v_cmp_ne_u32 vcc, s91, v{t0}\ns_cmp_lg_u64 vcc, 0\ns_cbranch_scc1 {retry_label}")
        a(f"v_cmp_ne_u32 vcc, s91, v{t1}\ns_cmp_lg_u64 vcc, 0\ns_cbranch_scc1 {retry_label}")
    def spin_guard(loop_label, sleep):
        a((f"s_sleep {sleep}\n" if sleep else "") + f"s_add_u32 s82, s82, 1\ns_cmp_lt_u32 s82, {SPIN_LIMIT:#x}\ns_cbranch_scc1 {loop_label}\ns_branch L_exit")
    def mfma(acc, A, B):
        a(f"v_mfma_f32_16x16x32_bf16 v[{acc}:{acc+3}], {A}, v[{B}:{B+3}], v[{acc}:{acc+3}]")
    def zero(regs):
        for r in regs: a(f"v_mov_b32 v{r}, 0")

    tabs = rounds_table(nf_rounds, wo_extra if wo_extra is not None else (0.0 if wodefer in ('post', 'seen') else 1.0))
    def table_lookup():
        ent = []
        for grp in ("lo", "hi"):
            st = 0
            for n in tabs[grp]:
                n -= P // 16
                assert 32 <= n < 64 + 32
                ent.append(st | ((n - 40) << 11)); st += n
            assert st == 1024 - P
        for i in range(16): a(f"s_mov_b32 s{64+i}, {ent[2*i] | (ent[2*i+1] << 16):#x}")
        a("s_lshr_b32 s6, s4, 3\ns_lshl_b32 s6, s6, 4\ns_add_u32 s6, s6, s5")
        a("s_lshr_b32 s7, s6, 1\ns_mov_b32 m0, s7\ns_and_b32 s6, s6, 1\ns_lshl_b32 s6, s6, 4\ns_movrels_b32 s7, s64")
        a("s_lshr_b32 s7, s7, s6\ns_and_b32 s62, s7, 0x7ff\ns_bfe_u32 s67, s7, 0x5000b\ns_add_u32 s67, s67, 40")

    def c(t):
        for ln in t.split("\n"): a.L.append("; " + ln)
    c("======== entry: workgroup b = 16*h + c (kv head h, member c); waves 0..3 helpers, waves 4..7 streamers ========")
    a("s_cmp_ge_u32 s2, 256\ns_cbranch_scc1 L_end")
    a("s_load_dwordx16 s[8:23], s[0:1], 0\ns_load_dwordx8 s[24:31], s[0:1], 64")
    if stamps: a("s_memrealtime s[84:85]")
    a("v_lshrrev_b32 v1, 6, v0\nv_and_b32 v0, 63, v0")
    a("s_lshr_b32 s4, s2, 4\ns_and_b32 s5, s2, 15")
    if hmix: a(f"s_and_b32 s6, s2, 7\ns_mul_i32 s6, s6, {hmix}\ns_add_u32 s4, s4, s6\ns_and_b32 s4, s4, 15")
    if hxor: a(f"s_xor_b32 s4, s4, {hxor}")
    a("v_readfirstlane_b32 s3, v1")
    a("s_mov_b32 s88, 0x3fb8aa3b\ns_mov_b32 s89, 0x3db504f3\ns_mov_b32 s90, 0xffff0000")
    a("v_and_b32 v6, 1, v0\nv_lshlrev_b32 v6, 4, v6\nv_mov_b32 v7, 0xffff\nv_lshlrev_b32 v7, v6, v7\nv_bfe_u32 v8, v0, 1, 2")
    for q in range(4):
        a(f"v_cmp_eq_u32 vcc, {q}, v8\nv_cndmask_b32 v{2+q}, 0, v7, vcc")
    a("s_lshl_b32 s56, s4, 4\ns_add_u32 s56, s56, s5")
    a("s_waitcnt lgkmcnt(0)")
    if stamps:
        a("s_mov_b32 s92, s84")
        for k in range(1, 8): a(f"s_mov_b32 s{92+k}, 0")
    srd(40, 30, DBGO + 0x40000 if (stamps or dbg) else WS_SIZE)
    if dstamp:
        a("s_cmp_eq_u32 s3, 2\ns_cbranch_scc0 L_nod0")
        dst(0, neg=True); dst(1)
        a("L_nod0:")
    a("s_cmp_ge_u32 s3, 4\ns_cbranch_scc1 L_stream")

    c("======== helpers (waves 0..3) ========")
    a(f"v_mov_b32 v{VZ}, 0\nv_lshlrev_b32 v{VL4}, 2, v0\nv_lshlrev_b32 v{VL16}, 4, v0")
    a(f"v_lshrrev_b32 v{VR8}, 3, v0\nv_and_b32 v{VC16}, 7, v0\nv_lshlrev_b32 v{VC16}, 4, v{VC16}")
    a(f"v_lshrrev_b32 v6, 5, v0\nv_lshlrev_b32 v6, 8, v6\nv_and_b32 v7, 3, v{VR8}\nv_lshlrev_b32 v7, 2, v7\nv_add3_u32 v{VFOLD}, v6, v7, v{VC16}")
    a(f"s_sub_u32 s57, s5, 10\ns_and_b32 s6, s57, 3\ns_mul_i32 s6, s6, {fperm}\ns_add_u32 s6, s6, s4\ns_and_b32 s6, s6, 15\ns_lshl_b32 s57, s57, 4\ns_add_u32 s57, s57, s6")
    a("s_cmp_eq_u32 s3, 0\ns_cbranch_scc1 L_h0")
    a("s_cmp_eq_u32 s3, 1\ns_cbranch_scc1 L_h1")
    a("s_barrier")
    a("s_branch L_hwait")

    c("---- wave 1: write the 'empty' marker into the hand-off slots this workgroup will fill later ----")
    a("L_h1:")
    a("v_mov_b32 v10, -1\nv_mov_b32 v11, -1\nv_mov_b32 v12, -1\nv_mov_b32 v13, -1")
    a(f"s_mul_i32 s6, s56, 1152\ns_add_u32 s6, s6, {AP:#x}")
    a(f"buffer_store_dwordx4 v[10:13], v{VL16}, s[40:43], s6 offen sc1")
    a(f"s_mov_b64 exec, 0xf\nbuffer_store_dword v10, v{VL4}, s[40:43], s6 offen offset:1024 sc1\ns_mov_b64 exec, -1")
    a("s_cmp_lt_u32 s5, 9\ns_cbranch_scc0 L_h1_nowo")
    a(f"s_lshl_b32 s6, s5, 4\ns_add_u32 s6, s6, s4\ns_lshl_b32 s6, s6, 8\ns_add_u32 s6, s6, {L2:#x}")
    a(f"buffer_store_dword v10, v{VL4}, s[40:43], s6 offen sc1")
    a("L_h1_nowo:")
    a("s_cmp_lt_u32 s57, 72\ns_cbranch_scc0 L_h1_noffn")
    a(f"s_mul_i32 s6, s57, 2304\ns_add_u32 s6, s6, {FP:#x}")
    a(f"buffer_store_dwordx4 v[10:13], v{VL16}, s[40:43], s6 offen sc1")
    a(f"buffer_store_dwordx4 v[10:13], v{VL16}, s[40:43], s6 offen offset:1024 sc1")
    a(f"buffer_store_dword v10, v{VL4}, s[40:43], s6 offen offset:2048 sc1")
    a("L_h1_noffn:")
    a("s_cmp_eq_u32 s5, 0\ns_cbranch_scc0 L_h1_nocnt")
    a(f"s_mul_i32 s6, s4, {cstride}\ns_add_u32 s6, s6, {CNT+coff:#x}\nv_mov_b32 v14, 0\ns_mov_b64 exec, 1")
    a(f"buffer_store_dword v14, v{VZ}, s[40:43], s6 offen sc1")
    if dynwo: a(f"buffer_store_dword v14, v{VZ}, s[40:43], s6 offen offset:256 sc1")
    a("s_mov_b64 exec, -1")
    a("L_h1_nocnt:")
    a("s_barrier")
    a("s_waitcnt vmcnt(0)")
    a("v_mov_b32 v10, 1")
    a(f"ds_write_b32 v{VZ}, v10 offset:{FLG+4}")
    stamp(1)
    a("s_branch L_hwait")

    c("---- wave 0: layernorm (rounded step by step like the bf16 reference), 144x64 slice of x@wq, exchange of the q partials ----")
    a("L_h0:")
    srd(32, 8, 1152)
    srd(36, 14, 576 * 8192)
    a("v_lshlrev_b32 v8, 1, v0")
    for i in range(9):
        a(f"buffer_load_ushort v{10+i}, v8, s[32:35], 0 offen offset:{128*i}")
    a(f"v_lshlrev_b32 v6, 13, v{VR8}\nv_add_u32 v6, v6, v{VC16}")
    a("s_lshr_b32 s58, s5, 2\ns_mul_i32 s59, s58, 144")
    a("s_lshl_b32 s6, s59, 13\ns_lshl_b32 s7, s4, 9\ns_add_u32 s6, s6, s7\ns_and_b32 s7, s5, 3\ns_lshl_b32 s7, s7, 7\ns_add_u32 s6, s6, s7")
    for t in range(18):
        a(f"buffer_load_dwordx4 a[{4*t}:{4*t+3}], v6, s[36:39], s6 offen {wpol}")
        if t < 17: a("s_add_u32 s6, s6, 0x10000")
    a(f"ds_write_b32 v{VZ}, v{VZ} offset:{FLG}\nds_write_b32 v{VZ}, v{VZ} offset:{FLG+4}\nds_write_b32 v{VZ}, v{VZ} offset:{FLG+8}\nds_write_b32 v{VZ}, v{VZ} offset:{FLG+12}\nds_write_b32 v{VZ}, v{VZ} offset:{FLG+16}")
    a("v_mov_b32 v20, -1\nv_mov_b32 v21, -1\nv_mov_b32 v22, -1\nv_mov_b32 v23, -1")
    a(f"ds_write_b128 v{VL16}, v[20:23] offset:{DQ}")
    a(f"v_mov_b32 v24, {4*NS}\nds_write_b32 v{VZ}, v24 offset:{TK}")
    a("s_waitcnt lgkmcnt(0)\ns_barrier")
    a(f"s_load_dword s91, s[30:31], {GOFF:#x}")
    a("s_waitcnt vmcnt(18)")
    stamp(1)
    for i in range(9): a(f"v_lshlrev_b32 v{10+i}, 16, v{10+i}")
    a("v_add_f32 v19, v10, v11")
    for i in range(2, 9): a(f"v_add_f32 v19, v19, v{10+i}")
    wave_sum(19, 20)
    a("v_mul_f32 v19, 0x3ae38e39, v19")
    rbf(21, 19)
    a("v_sub_f32 v22, v10, v19\nv_mul_f32 v23, v22, v22")
    for i in range(1, 9):
        a(f"v_sub_f32 v22, v{10+i}, v19\nv_fmac_f32 v23, v22, v22")
    wave_sum(23, 20)
    a("v_mul_f32 v23, 0x3ae38e39, v23")
    rbf(23, 23)
    a("v_add_f32 v23, 0x3727c5ac, v23")
    rbf(23, 23)
    a("v_sqrt_f32 v23, v23")
    rbf(23, 23)
    a("v_rcp_f32 v24, v23")
    for i in range(9):
        a(f"v_sub_f32 v22, v{10+i}, v21")
        rbf(22, 22)
        a("v_mul_f32 v25, v22, v24\nv_fma_f32 v26, -v25, v23, v22\nv_fma_f32 v25, v26, v24, v25")
        a(f"v_cvt_pk_bf16_f32 v{48+i}, v25, v25")
        a(f"ds_write_b32 v{VL4}, v{48+i} offset:{XS + 256*i}")
    a(f"s_lshl_b32 s6, s59, 2\nv_lshlrev_b32 v7, 2, v{VR8}\nv_add_u32 v7, s6, v7")
    for t in range(18):
        a(f"ds_read_b32 v{64+t}, v7 offset:{XS + 32*t}")
    stamp(2)
    zero(range(20, 24))
    a("s_waitcnt lgkmcnt(0)")
    if ffn_early: a(f"v_mov_b32 v26, 1\nds_write_b32 v{VZ}, v26 offset:{FLG+16}")
    a("s_add_u32 s91, s91, 1")
    for t in range(18):
        b = 24 + 4 * (t & 1)
        buildB(b, 64 + t)
        a(f"s_waitcnt vmcnt({17 - t})")
        mfma(20, f"a[{4*t}:{4*t+3}]", b)
    a(f"ds_write_b128 v{VL16}, v[20:23] offset:{SCR}")
    a(f"ds_read_b32 v24, v{VFOLD} offset:{SCR}\nds_read_b32 v25, v{VFOLD} offset:{SCR+640}")
    a("s_waitcnt lgkmcnt(0)")
    a("v_add_f32 v24, v24, v25\nv_mov_b32 v25, s91")
    spin_lds(4, 1, 26, VZ)
    a(f"s_lshl_b32 s6, s56, 9\ns_add_u32 s6, s6, {QP:#x}\nv_lshlrev_b32 v8, 3, v0")
    a(f"buffer_store_dwordx2 v[24:25], v8, s[40:43], s6 offen sc1")
    stamp(3)
    if ackwait: a("s_waitcnt vmcnt(0)")
    a(f"s_lshl_b32 s6, s4, 13\ns_add_u32 s6, s6, {QP:#x}\ns_add_u32 s7, s6, 4096\nv_lshlrev_b32 v8, 5, v0")
    a("s_mov_b32 s82, 0")
    a("L_h0_gq:")
    for k in range(4):
        for hf in range(2):
            r = 64 + 8 * k + 4 * hf
            a(f"buffer_load_dwordx4 v[{r}:{r+3}], v8, s[40:43], s{6 + (k >> 1)} offen offset:{2048*(k & 1) + 16*hf} sc1")
    a("s_waitcnt vmcnt(0)")
    tag_check([65 + 2 * i for i in range(16)], 26, 27, "L_h0_gq_retry")
    stamp(4)
    for r in range(4):
        a(f"v_add_f32 v{64+2*r}, v{64+2*r}, v{72+2*r}\nv_add_f32 v{64+2*r}, v{64+2*r}, v{80+2*r}\nv_add_f32 v{64+2*r}, v{64+2*r}, v{88+2*r}")
    a("v_cvt_pk_bf16_f32 v64, v64, v66\nv_cvt_pk_bf16_f32 v65, v68, v70")
    a("v_lshlrev_b32 v8, 3, v0")
    a(f"ds_write_b64 v8, v[64:65] offset:{QL}")
    a("v_mov_b32 v10, 1\ns_waitcnt lgkmcnt(0)")
    a(f"ds_write_b32 v{VZ}, v10 offset:{FLG}")
    dst(2); dst(3, neg=True)
    if dbg:
        a(f"s_lshl_b32 s6, s2, 9\ns_add_u32 s6, s6, {DBGO:#x}")
        a("buffer_store_dwordx2 v[64:65], v8, s[40:43], s6 offen")
    stamp(5)
    a("s_branch L_hjob")
    a("L_h0_gq_retry:")
    spin_guard("L_h0_gq", qsleep)

    c("---- helpers 1..3 wait until q (and the normalised x) are in LDS; then the background jobs ----")
    a("L_hwait:")
    if ffn_early: spin_lds(16, 1, 26, VZ)
    else: spin_lds(0, 1, 26, VZ)
    a("L_hjob:")
    a("s_cmp_lt_u32 s5, 9\ns_cbranch_scc1 L_job_wo")
    a("s_cmp_eq_u32 s5, 9\ns_cbranch_scc1 L_job_fin")
    a("s_cmp_eq_u32 s3, 0\ns_cbranch_scc1 L_preB1")
    if not abl_ffn: a("s_cmp_lt_u32 s57, 72\ns_cbranch_scc1 L_job_ffn")

    c("---- wave 0: hands out the rounds of the head's shared pool (one atomic per batch) to the streamers through LDS ----")
    a("L_preB1:")
    a("s_cmp_eq_u32 s3, 0\ns_cbranch_scc0 L_B1")
    table_lookup()
    a(f"s_mul_i32 s72, s4, {cstride}\ns_add_u32 s72, s72, {CNT+coff:#x}")
    if prog: a("s_mov_b32 s77, 0\ns_mov_b32 s78, 0")
    a(f"s_mov_b32 s73, 0")
    a(f"s_lshl_b32 s74, s67, 2\ns_sub_u32 s74, s74, {lax}")
    if touch:
        a("s_lshl_b32 s6, s4, 24")
        a("s_add_u32 s32, s10, s6\ns_addc_u32 s33, s11, 0\ns_mov_b32 s34, 0x1000000\ns_mov_b32 s35, 0x20000")
        a("s_add_u32 s36, s12, s6\ns_addc_u32 s37, s13, 0\ns_mov_b32 s38, 0x1000000\ns_mov_b32 s39, 0x20000")
        a(f"s_sub_u32 s77, s74, {4*touch}\ns_mov_b32 s82, 0")
        a("L_touchw:")
        a(f"ds_read_b32 v96, v{VZ} offset:{TK}\ns_waitcnt lgkmcnt(0)\nv_readfirstlane_b32 s75, v96")
        a("s_cmp_ge_i32 s75, s77\ns_cbranch_scc1 L_touch")
        spin_guard("L_touchw", 8)
        a("L_touch:")
        a(f"v_lshlrev_b32 v97, 20, v0\nv_add_u32 v97, {(1024 - P) * 16384:#x}, v97\ns_mov_b64 exec, 7")
        a("buffer_load_dword v98, v97, s[32:35], 0 offen nt\nbuffer_load_dword v99, v97, s[36:39], 0 offen nt\ns_mov_b64 exec, -1\ns_waitcnt vmcnt(0)")
    a("s_mov_b32 s82, 0")
    a("L_disp:")
    a(f"ds_read_b32 v96, v{VZ} offset:{TK}")
    a("s_waitcnt lgkmcnt(0)")
    a("v_readfirstlane_b32 s75, v96")
    a(f"s_sub_u32 s75, s75, s74\ns_ashr_i32 s75, s75, 2\ns_add_u32 s75, s75, {1 + LA}\ns_sub_u32 s75, s75, s73")
    a("s_cmp_gt_i32 s75, 0\ns_cbranch_scc1 L_disp_go")
    spin_guard("L_disp", dsleep)
    a("L_disp_go:")
    a("s_min_u32 s75, s75, 4")
    if prog: stamp(4)
    a("v_mov_b32 v96, s75\ns_mov_b64 exec, 1")
    a(f"buffer_atomic_add v96, v{VZ}, s[40:43], s72 offen sc0 sc1")
    a("s_waitcnt vmcnt(0)")
    if prog: a("s_memrealtime s[84:85]\ns_waitcnt lgkmcnt(0)\ns_sub_u32 s6, s84, s96\ns_add_u32 s77, s77, s6\ns_add_u32 s78, s78, 1")
    a("v_readfirstlane_b32 s76, v96")
    a("s_lshl_b32 s6, 1, s75\ns_sub_u32 s6, s6, 1\ns_mov_b32 exec_lo, s6")
    a(f"v_add_u32 v96, s76, v0\nv_add_u32 v97, {1024 - P}, v96\nv_lshlrev_b32 v97, 14, v97")
    a(f"v_mov_b32 v98, 0x1000000\nv_cmp_gt_u32 vcc, {P}, v96\nv_cndmask_b32 v97, v98, v97, vcc")
    a(f"s_lshl_b32 s6, s73, 2\nv_add_u32 v98, s6, v{VL4}")
    a(f"ds_write_b32 v98, v97 offset:{DQ}")
    a("s_mov_b64 exec, -1")
    a("s_add_u32 s73, s73, s75\ns_add_u32 s76, s76, s75\ns_mov_b32 s82, 0")
    a(f"s_cmp_le_u32 s76, {P}\ns_cbranch_scc1 L_disp")
    if prog and stamps: a("s_mov_b32 s93, s73\ns_mov_b32 s94, s77\ns_mov_b32 s95, s78")
    if wodefer is True:
        a(f"v_mov_b32 v96, 1\nds_write_b32 v{VZ}, v96 offset:{FLG+12}")
        a("s_cmp_lt_u32 s5, 9\ns_cbranch_scc1 L_wo_loads")
    if wodefer == "seen":
        a("s_cmp_lt_u32 s5, 9\ns_cbranch_scc1 L_wo_wait")
    if dynwo:
        assert wodefer == "post"
        a("s_mov_b32 s55, 15")
        a("s_cmp_eq_u32 s5, 9\ns_cbranch_scc0 L_role_get\ns_cmp_lt_u32 s4, 9\ns_cbranch_scc1 L_role_put")
        a("L_role_get:")
        a("v_mov_b32 v96, 1\ns_mov_b64 exec, 1")
        a(f"buffer_atomic_add v96, v{VZ}, s[40:43], s72 offen offset:256 sc0 sc1")
        a("s_waitcnt vmcnt(0)\nv_readfirstlane_b32 s6, v96\ns_mov_b64 exec, -1")
        a("s_cmp_lt_u32 s6, 9\ns_cselect_b32 s55, s6, 15")
        a("L_role_put:")
        a(f"v_mov_b32 v96, s55\nds_write_b32 v{VZ}, v96 offset:{FLG+20}")
    a("L_B1:")
    srd(48, 26, 1152)
    a("v_lshrrev_b32 v88, 4, v0\nv_and_b32 v89, 15, v0")
    a("v_mul_u32_u24 v94, 1152, v88\nv_lshlrev_b32 v90, 4, v89\nv_add_u32 v90, v94, v90")
    a("v_bfe_u32 v91, v0, 3, 1\nv_lshlrev_b32 v91, 3, v91\nv_add3_u32 v91, v94, v91, s91x".replace("s91x", "v91") if False else "v_bfe_u32 v91, v0, 3, 1\nv_lshlrev_b32 v91, 3, v91\nv_add_u32 v91, v94, v91\nv_add_u32 v91, 1024, v91")
    a(f"v_lshlrev_b32 v92, 2, v{VR8}")
    a("v_lshlrev_b32 v93, 3, v89\nv_lshlrev_b32 v94, 1, v88\nv_add_u32 v93, v93, v94\ns_lshl_b32 s61, s4, 7")
    stamp(6)
    a("s_waitcnt lgkmcnt(0)\ns_barrier")
    if dynwo:
        a(f"ds_read_b32 v95, v{VZ} offset:{FLG+20}\ns_waitcnt lgkmcnt(0)\nv_readfirstlane_b32 s55, v95")
    else:
        a("s_mov_b32 s55, s5")
    a("s_cmp_lt_u32 s55, 9\ns_cbranch_scc1 L_wo_post")
    a("s_cmp_eq_u32 s5, 9\ns_cbranch_scc0 L_exit")
    a("s_cmp_lt_u32 s4, 9\ns_cbranch_scc0 L_exit")
    a("s_cmp_eq_u32 s3, 0\ns_cbranch_scc1 L_fin_post")
    a("s_branch L_exit")

    c("---- output projection of one 64-column slice: combine the 16 softmax partials of the head, o (bf16) @ wo ----")
    a("L_job_wo:")
    def wo_loads():
        srd(36, 16, 4096 * 1152)
        a(f"v_mul_u32_u24 v6, 1152, v{VR8}\nv_add_u32 v6, v6, v{VC16}")
        a("s_lshl_b32 s6, s4, 8\ns_lshl_b32 s7, s3, 5\ns_add_u32 s6, s6, s7\ns_mul_i32 s6, s6, 1152\ns_lshl_b32 s7, " + ("s55" if wodefer == "post" else "s5") + ", 7\ns_add_u32 s6, s6, s7")
        for t in range(8):
            off = (128 * (t >> 2) + 8 * (t & 3)) * 1152
            a(f"s_add_u32 s7, s6, {off}")
            if not abl_wo: a(f"buffer_load_dwordx4 a[{4*t}:{4*t+3}], v6, s[36:39], s7 offen {wpol}")
    if wodefer == "post":
        a("s_branch L_preB1")
    else:
        if wodefer:
            a("s_cmp_eq_u32 s3, 0\ns_cbranch_scc1 L_preB1")
            a("L_wo_wait:")
            spin_lds(12, 4 if wodefer == "seen" else 1, 26, VZ, sleep=8 if wodefer is True else 4)
        a("L_wo_loads:")
        wo_loads()
        if wodefer: a("s_branch L_B1")
        else: a("s_waitcnt vmcnt(0)\ns_branch L_preB1")
    a("L_wo_post:")
    if tailst: stamp(1)
    if wodefer == "post":
        a("s_barrier")
        wo_loads()
    a(f"s_mul_i32 s60, s4, {16*1152}\ns_add_u32 s60, s60, {AP:#x}")
    for i in range(4): a(f"s_add_u32 s{64+i}, s60, {4608*i}")
    a("s_lshl_b32 s7, s3, 8")
    for i in range(4): a(f"s_add_u32 s{68+i}, s{64+i}, s7")
    a("s_mov_b32 s82, 0")
    if mpoll:
        for i in range(4): a(f"s_mov_b64 s[{72+2*i}:{73+2*i}], -1")
    a("L_wo_g:")
    for i in range(4):
        if mpoll: a(f"s_cmp_eq_u64 s[{72+2*i}:{73+2*i}], 0\ns_cbranch_scc1 L_wo_sk{i}\ns_mov_b64 exec, s[{72+2*i}:{73+2*i}]")
        a(f"buffer_load_dwordx4 v[{64+4*i}:{67+4*i}], v90, s[40:43], s{68+i} offen {hpol}")
        a(f"buffer_load_dwordx2 v[{80+2*i}:{81+2*i}], v91, s[40:43], s{64+i} offen {hpol}")
        if mpoll: a(f"L_wo_sk{i}:")
    if mpoll:
        a("s_mov_b64 exec, -1\ns_waitcnt vmcnt(0)")
        for i in range(4):
            a(f"v_max3_u32 v{24+i}, v{64+4*i}, v{65+4*i}, v{66+4*i}")
        for i in range(4):
            a(f"v_max3_u32 v{24+i}, v{24+i}, v{67+4*i}, v{80+2*i}")
        for i in range(4):
            a(f"v_max_u32 v{24+i}, v{24+i}, v{81+2*i}")
        for i in range(4):
            a(f"v_cmp_eq_u32 s[{72+2*i}:{73+2*i}], -1, v{24+i}")
        a("s_or_b64 s[6:7], s[72:73], s[74:75]\ns_or_b64 vcc, s[76:77], s[78:79]\ns_or_b64 vcc, vcc, s[6:7]\ns_cbranch_scc1 L_wo_retry")
    else:
        a("s_waitcnt vmcnt(0)")
        valid_check(range(64, 88), 26, "L_wo_retry")
    if tailst: stamp(2)
    a("v_max3_f32 v20, v80, v82, v84\nv_max_f32 v20, v20, v86")
    allrow_op("v_max_f32", 20, 21)
    for i in range(4): a(f"v_sub_f32 v{24+i}, v{80+2*i}, v20")
    for i in range(4): a(f"v_exp_f32 v{24+i}, v{24+i}")
    a("v_mul_f32 v22, v24, v81\nv_fmac_f32 v22, v25, v83\nv_fmac_f32 v22, v26, v85\nv_fmac_f32 v22, v27, v87")
    allrow_op("v_add_f32", 22, 21)
    for r in range(4):
        a(f"v_mul_f32 v{28+r}, v24, v{64+r}")
        for i in range(1, 4):
            a(f"v_fmac_f32 v{28+r}, v{24+i}, v{64+4*i+r}")
    treduce(28)
    a("v_rcp_f32 v22, v22")
    a("v_mul_f32 v28, v28, v22\nv_cvt_pk_bf16_f32 v28, v28, v28")
    for t in range(8):
        off = (16 * (t & 3) + 8 * (t >> 2)) * 4
        a(f"ds_bpermute_b32 v{32+t}, v92, v28 offset:{off}")
    zero(range(20, 24))
    if trim: a(f"s_lshl_b32 s6, s3, 11\nv_add_u32 v8, s6, v{VL16}")
    a("s_waitcnt lgkmcnt(0)")
    if not trim:
        for t in range(8):
            b = 44 + 4 * (t & 1)
            buildB(b, 32 + t)
            mfma(20, f"a[{4*t}:{4*t+3}]", b)
    else:
        B = [44, 48, 52, 56]
        buildB(B[0], 32); buildB(B[1], 33)
        for t in range(8):
            if t + 2 < 8: buildB(B[(t + 2) % 4], 32 + t + 2)
            mfma(20, f"a[{4*t}:{4*t+3}]", B[t % 4])
    if not trim: a(f"s_lshl_b32 s6, s3, 11\nv_add_u32 v8, s6, v{VL16}")
    a(f"ds_write_b128 v8, v[20:23] offset:{SCR}")
    if tailst: stamp(3)
    a("s_waitcnt lgkmcnt(0)\ns_barrier")
    if tailst: stamp(4)
    a("s_cmp_eq_u32 s3, 0\ns_cbranch_scc0 L_exit")
    for w in range(4):
        a(f"ds_read_b32 v{24+2*w}, v{VFOLD} offset:{SCR + 2048*w}\nds_read_b32 v{25+2*w}, v{VFOLD} offset:{SCR + 2048*w + 640}")
    a("s_waitcnt lgkmcnt(0)")
    a("v_add_f32 v24, v24, v25\nv_add_f32 v26, v26, v27\nv_add_f32 v28, v28, v29\nv_add_f32 v30, v30, v31")
    a("v_add_f32 v24, v24, v26\nv_add_f32 v28, v28, v30\nv_add_f32 v24, v24, v28")
    a(f"s_lshl_b32 s6, s55, 4\ns_add_u32 s6, s6, s4\ns_lshl_b32 s6, s6, 8\ns_add_u32 s6, s6, {L2:#x}")
    a(f"buffer_store_dword v24, v{VL4}, s[40:43], s6 offen {hpol}")
    stamp(7)
    a("s_branch L_exit")
    a("L_wo_retry:")
    spin_guard("L_wo_g", 0 if trim else 1)

    c("---- final consumer (c == 9, h < 9; column slice h): sums the FFN partials, later the 16 head partials, writes out ----")
    a("L_job_fin:")
    a("s_cmp_lt_u32 s4, 9\ns_cbranch_scc0 L_preB1")
    a("s_cmp_eq_u32 s3, 0\ns_cbranch_scc0 L_preB1")
    srd(32, 8, 1152)
    a("v_and_b32 v10, 15, v0\nv_lshlrev_b32 v11, 3, v10\nv_lshrrev_b32 v12, 4, v0\nv_lshlrev_b32 v13, 1, v12\nv_add_u32 v11, v11, v13")
    a("s_lshl_b32 s61, s4, 7")
    a("buffer_load_ushort v15, v11, s[32:35], s61 offen")
    a("v_lshlrev_b32 v16, 9, v0\nv_add_u32 v16, 4, v16")
    a("s_mov_b32 s82, 0")
    a("L_fin_flags:")
    for i in range(4):
        a(f"s_mov_b32 s6, {QP + 32768*i:#x}\nbuffer_load_dword v{20+i}, v16, s[40:43], s6 offen sc1")
    a("s_waitcnt vmcnt(0)")
    tag_check([20, 21, 22, 23], 26, 27, "L_fin_flags_retry")
    a("s_cmp_eq_u32 s4, 0\ns_cbranch_scc0 L_fin_flags_ok")
    a(f"v_mov_b32 v20, s91\ns_mov_b32 s6, {GOFF:#x}\ns_mov_b64 exec, 1")
    a(f"buffer_store_dword v20, v{VZ}, s[40:43], s6 offen sc1\ns_mov_b64 exec, -1")
    a("L_fin_flags_ok:")
    a("v_mul_u32_u24 v12, 2304, v12\nv_lshlrev_b32 v13, 4, v10\nv_add_u32 v12, v12, v13")
    a(f"s_lshl_b32 s62, s4, 8\ns_add_u32 s62, s62, {FP:#x}")
    a(f"v_mul_u32_u24 v16, 2304, v0\nv_min_u32 v18, 7, v0\nv_mul_u32_u24 v18, 2304, v18\ns_add_u32 s63, s62, {64*2304}")
    a("s_mov_b32 s82, 0")
    if abl_ffn: a("v_mov_b32 v17, 0\nv_lshlrev_b32 v15, 16, v15\ns_branch L_preB1")
    a("L_fin_p:")
    a("buffer_load_dword v20, v16, s[40:43], s62 offen sc1\nbuffer_load_dword v21, v18, s[40:43], s63 offen sc1\ns_waitcnt vmcnt(0)")
    a("v_max_u32 v20, v20, v21\nv_cmp_eq_u32 vcc, -1, v20\ns_cmp_lg_u64 vcc, 0\ns_cbranch_scc1 L_fin_p_retry")
    a("s_mov_b32 s82, 0")
    a("L_fin_f:")
    a("s_mov_b32 s6, s62")
    for i in range(18):
        a(f"buffer_load_dwordx4 v[{48+4*i}:{51+4*i}], v12, s[40:43], s6 offen sc1")
        if i < 17: a("s_add_u32 s6, s6, 9216")
    a("s_waitcnt vmcnt(0)")
    valid_check(range(48, 120), 26, "L_fin_f_retry")
    for i in range(1, 18):
        for r in range(4):
            a(f"v_add_f32 v{48+r}, v{48+r}, v{48+4*i+r}")
    treduce(48)
    rbf(17, 48)
    a("v_lshlrev_b32 v15, 16, v15")
    a("s_branch L_preB1")
    a("L_fin_post:")
    if tailst: stamp(1)
    a(f"s_lshl_b32 s62, s4, 12\ns_add_u32 s62, s62, {L2:#x}")
    a("s_mov_b32 s82, 0")
    def fin_issue(b):
        for i in range(4):
            a(f"buffer_load_dwordx4 v[{b+4*i}:{b+3+4*i}], v{VL16}, s[40:43], s62 offen offset:{1024*i} {hpol}")
    def fin_sum(b):
        for r in range(4):
            a(f"v_add_f32 v{48+r}, v{b+r}, v{b+4+r}\nv_add_f32 v{b+8+r}, v{b+8+r}, v{b+12+r}\nv_add_f32 v{48+r}, v{48+r}, v{b+8+r}")
    if not fpipe:
        a("L_fin_g:")
        fin_issue(48)
        a("s_waitcnt vmcnt(0)")
        valid_check(range(48, 64), 26, "L_fin_g_retry")
        if tailst: stamp(2)
        fin_sum(48)
    else:
        fin_issue(64)
        a("s_sleep 8")
        a("L_fin_g:")
        fin_issue(96)
        a("s_waitcnt vmcnt(4)")
        valid_check(range(64, 80), 26, "L_fin_gA_retry")
        fin_sum(64)
        a("s_branch L_fin_done")
        a("L_fin_gA_retry:")
        fin_issue(64)
        a("s_waitcnt vmcnt(4)")
        valid_check(range(96, 112), 26, "L_fin_gB_retry")
        fin_sum(96)
        a("L_fin_done:")
    treduce(48)
    rbf(48, 48)
    a("v_add_f32 v48, v15, v48")
    rbf(48, 48)
    a("v_add_f32 v48, v48, v17\nv_cvt_pk_bf16_f32 v48, v48, v48")
    a(f"buffer_store_short v48, v93, s[48:51], s61 offen {outpol}")
    dst(6)
    stamp(7)
    a("s_branch L_exit")
    a("L_fin_flags_retry:")
    spin_guard("L_fin_flags", 32)
    a("L_fin_p_retry:")
    spin_guard("L_fin_p", 64)
    a("L_fin_f_retry:")
    spin_guard("L_fin_f", 16)
    if not fpipe:
        a("L_fin_g_retry:")
        spin_guard("L_fin_g", 0 if trim else 1)
    else:
        a("L_fin_gB_retry:")
        a(f"s_add_u32 s82, s82, 1\ns_cmp_lt_u32 s82, {SPIN_LIMIT:#x}\ns_cbranch_scc1 L_fin_g\ns_branch L_exit")

    c("---- FFN task f (waves 1..3): 64 columns of gate/up, gelu(g)*u, 64 rows of down ----")
    a("L_job_ffn:")
    srd(32, 20, 576 * 9216)
    srd(36, 22, 576 * 9216)
    srd(48, 24, 4608 * 1152)
    a("s_sub_u32 s58, s3, 1")
    a(f"v_mul_u32_u24 v6, 9216, v{VR8}\nv_add_u32 v6, v6, v{VC16}")
    a(f"v_mul_u32_u24 v7, 1152, v{VR8}\nv_add_u32 v7, v7, v{VC16}")
    a(f"s_mul_i32 s60, s58, 192\ns_lshl_b32 s6, s60, 2\nv_lshlrev_b32 v10, 2, v{VR8}\nv_add_u32 v10, s6, v10")
    a("s_mul_i32 s62, s60, 9216\ns_lshl_b32 s6, s57, 7\ns_add_u32 s62, s62, s6")
    a("s_mul_i32 s63, s57, 73728\ns_mul_i32 s6, s58, 384\ns_add_u32 s63, s63, s6")
    if ffn_contig:
        a(f"v_mov_b32 v6, v{VL16}\nv_mov_b32 v7, v{VL16}")
        a("s_mul_i32 s62, s57, 73728\ns_mul_i32 s6, s58, 24576\ns_add_u32 s62, s62, s6\ns_mov_b32 s63, s62")
    loads = []
    for t in range(24): loads += [("g", t), ("u", t)]
    for t in range(8): loads += [("d", t, 0), ("d", t, 1), ("d", t, 2)]
    R = W
    def issue(i):
        ld = loads[i]; r = 4 * (i % R)
        if ld[0] == "g":
            a(f"buffer_load_dwordx4 a[{r}:{r+3}], v6, s[32:35], s62 offen {wpol}")
        elif ld[0] == "u":
            a(f"buffer_load_dwordx4 a[{r}:{r+3}], v6, s[36:39], s62 offen {wpol}\ns_add_u32 s62, s62, {1024 if ffn_contig else 8*9216}")
        else:
            a(f"buffer_load_dwordx4 a[{r}:{r+3}], v7, s[48:51], s63 offen offset:{(1024 if ffn_contig else 128)*ld[2]} {wpol}")
            if ld[2] == 2: a(f"s_add_u32 s63, s63, {3072 if ffn_contig else 8*1152}")
    for i in range(W): issue(i)
    zero(range(20, 40))
    for i, ld in enumerate(loads):
        if ld[0] == "g":
            t = ld[1]
            if t % 4 == 0:
                for u in range(4): a(f"ds_read_b32 v{48+u}, v10 offset:{XS + 32*(t+u)}")
                a("s_waitcnt lgkmcnt(0)")
            buildB(44, 48 + (t % 4))
        if ld[0] == "d" and ld[1] == 0 and ld[2] == 0:
            a(f"s_lshl_b32 s6, s58, 11\nv_add_u32 v8, s6, v{VL16}")
            a(f"ds_write_b128 v8, v[20:23] offset:{SCR}\nds_write_b128 v8, v[24:27] offset:{SCR+1024}")
            a("v_mov_b32 v11, 1\ns_waitcnt lgkmcnt(0)")
            a(f"s_mov_b64 exec, 1\nds_add_u32 v{VZ}, v11 offset:{FLG+8}\ns_mov_b64 exec, -1")
            spin_lds(8, 3, 26, VZ)
            for w in range(3):
                for m in range(2):
                    a(f"ds_read_b32 v{48+4*w+2*m}, v{VFOLD} offset:{SCR+2048*w+1024*m}\nds_read_b32 v{49+4*w+2*m}, v{VFOLD} offset:{SCR+2048*w+1024*m+640}")
            a("s_waitcnt lgkmcnt(0)")
            a("v_add_f32 v48, v48, v49\nv_add_f32 v52, v52, v53\nv_add_f32 v56, v56, v57\nv_add_f32 v48, v48, v52\nv_add_f32 v48, v48, v56")
            a("v_add_f32 v50, v50, v51\nv_add_f32 v54, v54, v55\nv_add_f32 v58, v58, v59\nv_add_f32 v50, v50, v54\nv_add_f32 v50, v50, v58")
            rbf(48, 48); rbf(50, 50)
            a("v_mul_f32 v52, v48, v48\nv_mul_f32 v52, v52, v48\nv_mul_f32 v52, 0x3d372713, v52\nv_add_f32 v52, v48, v52")
            a("v_mul_f32 v52, 0x3f4c422a, v52\nv_mul_f32 v52, 0xc038aa3b, v52\nv_exp_f32 v52, v52")
            a("v_add_f32 v52, 1.0, v52\nv_rcp_f32 v52, v52")
            a("v_mul_f32 v52, v48, v52")
            rbf(52, 52)
            a("v_mul_f32 v52, v52, v50\nv_cvt_pk_bf16_f32 v52, v52, v52")
            a(f"s_lshl_b32 s6, s58, 8\nv_add_u32 v8, s6, v{VL4}")
            a(f"ds_write_b32 v8, v52 offset:{HS}")
            a(f"v_lshlrev_b32 v8, 2, v{VR8}\nv_add_u32 v8, s6, v8")
            for t in range(8): a(f"ds_read_b32 v{64+t}, v8 offset:{HS + 32*t}")
            a("s_waitcnt lgkmcnt(0)")
        if ld[0] == "d" and ld[2] == 0:
            buildB(44, 64 + ld[1])
        a(f"s_waitcnt vmcnt({min(W, len(loads) - i) - 1})")
        r = 4 * (i % R)
        acc = 20 if ld[0] == "g" else 24 if ld[0] == "u" else 28 + 4 * ld[2]
        mfma(acc, f"a[{r}:{r+3}]", 44)
        if i + W < len(loads): issue(i + W)
    a(f"s_mul_i32 s6, s58, 3072\nv_add_u32 v8, s6, v{VL16}\nv_add_u32 v9, s6, v{VFOLD}")
    for u in range(3):
        a(f"ds_write_b128 v8, v[{28+4*u}:{31+4*u}] offset:{SCR2 + 1024*u}")
    for u in range(3):
        a(f"ds_read_b32 v{48+2*u}, v9 offset:{SCR2 + 1024*u}\nds_read_b32 v{49+2*u}, v9 offset:{SCR2 + 1024*u + 640}")
    a("s_waitcnt lgkmcnt(0)")
    a(f"s_mul_i32 s6, s57, 2304\ns_mul_i32 s7, s58, 768\ns_add_u32 s6, s6, s7\ns_add_u32 s6, s6, {FP:#x}")
    for u in range(3):
        a(f"v_add_f32 v{48+2*u}, v{48+2*u}, v{49+2*u}")
        a(f"buffer_store_dword v{48+2*u}, v{VL4}, s[40:43], s6 offen offset:{256*u} sc1")
    a("s_branch L_preB1")

    c("======== streamers (waves 4..7): 16-key tiles, q.k by dot2 + DPP, online softmax, p@v by MFMA with a diagonal p operand ========")
    a("L_stream:")
    a("s_lshl_b32 s6, s4, 24")
    a("s_add_u32 s32, s10, s6\ns_addc_u32 s33, s11, 0\ns_mov_b32 s34, 0x1000000\ns_mov_b32 s35, 0x20000")
    a("s_add_u32 s36, s12, s6\ns_addc_u32 s37, s13, 0\ns_mov_b32 s38, 0x1000000\ns_mov_b32 s39, 0x20000")
    a("s_sub_u32 s58, s3, 4")
    a("s_barrier")
    table_lookup()
    a("s_lshl_b32 s61, s62, 14")
    a("s_lshl_b32 s60, s58, 12\ns_add_u32 s60, s60, s61")
    a("s_lshl_b32 s67, s67, 2")
    a("v_lshlrev_b32 v1, 4, v0")
    STR = 16384
    def kload(s, so):
        for j in range(4):
            r = 64 + 16 * s + 4 * j
            a(f"buffer_load_dwordx4 v[{r}:{r+3}], v1, s[32:35], {so} offen offset:{1024*j} {kvpol}")
    def vload(s, so):
        for j in range(4):
            r = 16 * s + 4 * j
            a(f"buffer_load_dwordx4 a[{r}:{r+3}], v1, s[36:39], {so} offen offset:{1024*j} {kvpol}")
    if ipace is not None:
        a("v_mov_b32 v19, 0\ns_mov_b32 s63, 0")
        for s in range(NS):
            if s:
                a(f"s_cmp_eq_u32 s63, 1\ns_cbranch_scc1 L_pk_{s}")
                a(f"s_waitcnt vmcnt({ipace})")
                a(f"ds_read_b32 v62, v19 offset:{FLG}\ns_waitcnt lgkmcnt(0)\nv_readfirstlane_b32 s63, v62")
                a(f"L_pk_{s}:")
            kload(s, "s60")
            if s:
                a(f"s_cmp_eq_u32 s63, 1\ns_cbranch_scc1 L_pv_{s}")
                a(f"s_waitcnt vmcnt({ipace})")
                a(f"L_pv_{s}:")
            vload(s, "s60")
            a(f"s_mov_b32 s{70+s}, s60\ns_add_u32 s60, s60, {STR}")
    elif not vlag:
        for s in range(NS):
            if pace and s: a(f"s_waitcnt vmcnt({pace})")
            kload(s, "s60")
            if pace and s: a(f"s_waitcnt vmcnt({pace})")
            vload(s, "s60")
            a(f"s_mov_b32 s{70+s}, s60\ns_add_u32 s60, s60, {STR}")
    else:
        for s in range(NS): a(f"s_add_u32 s{70+s}, s60, {STR*s}")
        for s in range(NS):
            kload(s, f"s{70+s}")
            if s: vload(s - 1, f"s{69+s}")
        vload(NS - 1, f"s{69+NS}")
    stamp(1)
    a("v_mov_b32 v19, 0")
    spin_lds(0, 1, 62, 19)
    stamp(2)
    a("v_and_b32 v62, 15, v0\nv_lshlrev_b32 v62, 4, v62")
    a(f"ds_read_b128 v[6:9], v62 offset:{QL}\nds_read_b128 v[10:13], v62 offset:{QL+256}")
    a("v_mov_b32 v14, 0xf149f2ca\nv_mov_b32 v16, 0xf149f2ca\nv_mov_b32 v17, 0")
    zero(range(20, 24))
    a("s_mov_b32 s64, 0x1000000")
    a(f"s_mov_b32 s66, {L}\ns_mov_b32 s65, 0")
    a("s_waitcnt lgkmcnt(0)")
    if prog:
        a("s_lshl_b32 s80, s58, 7")
        a(f"v_lshlrev_b32 v62, 2, v0\nv_add_u32 v62, s80, v62\nv_mov_b32 v63, 0\ns_mov_b64 exec, 0xffffffff\nds_write_b32 v62, v63 offset:{PRG}\ns_mov_b64 exec, -1\ns_waitcnt lgkmcnt(0)")
    a("L_loop:")
    S0, S1, Q0, Q1 = 24, 28, 6, 10
    for s in range(NS):
        kb = 64 + 16 * s; vb = 16 * s; rs = (s + L) % NS
        a(f"s_cmp_ge_u32 s{70+s}, s64\ns_cbranch_scc1 L_loop_end")
        if prog and s == 0:
            a("s_memrealtime s[84:85]\ns_waitcnt lgkmcnt(0)\nv_mov_b32 v62, s80\nv_mov_b32 v63, s84")
            a(f"ds_write_b32 v62, v63 offset:{PRG}\ns_add_u32 s80, s80, 4")
        a(f"s_cmp_ge_u32 s65, s64\ns_cbranch_scc1 L_notk_{s}")
        if s < NS - L: a(f"s_cmp_lt_u32 s66, {NS}\ns_cbranch_scc1 L_notk_{s}")
        a(f"v_mov_b32 v62, 0\nv_mov_b32 v63, 1\ns_mov_b64 exec, 1\nds_add_rtn_u32 v63, v62, v63 offset:{TK}\ns_mov_b64 exec, -1")
        a(f"L_notk_{s}:")
        if exact0 and s < NS - L: a(f"s_cmp_lt_u32 s66, {NS}\ns_cbranch_scc1 L_kw0_{s}")
        a(f"s_waitcnt vmcnt({8*L-4})")
        if exact0 and s < NS - L: a(f"L_kwb_{s}:")
        for e in range(4):
            for j in range(4):
                for (S, Q) in ((S0, Q0), (S1, Q1)):
                    if e == 0: a(f"v_dot2_f32_bf16 v{S+j}, v{kb+4*j}, v{Q}, 0")
                    else: a(f"v_dot2c_f32_bf16 v{S+j}, v{kb+4*j+e}, v{Q+e}")
        if s < NS - L: a(f"s_cmp_lt_u32 s66, {NS}\ns_cbranch_scc1 L_skipK_{s}")
        a(f"s_cmp_ge_u32 s65, s64\ns_cbranch_scc1 L_back_{s}")
        a("s_waitcnt lgkmcnt(0)\nv_readfirstlane_b32 s6, v63")
        a(f"s_cmp_lt_u32 s6, s67\ns_cbranch_scc0 L_dyn_{s}")
        a("s_lshl_b32 s65, s6, 12\ns_add_u32 s65, s65, s61")
        a(f"L_back_{s}:")
        a(f"s_mov_b32 s{70+rs}, s65")
        kload(rs, "s65")
        if s < NS - L: a(f"L_skipK_{s}:")
        if vlag:
            ps = (s + L - 1) % NS
            if s < NS - L + 1: a(f"s_cmp_lt_u32 s66, {NS+1}\ns_cbranch_scc1 L_skipV_{s}")
            vload(ps, f"s{70+ps}")
            if s < NS - L + 1: a(f"L_skipV_{s}:")
        for j in range(4): a(f"v_add_f32_dpp v{S0+j}, v{S0+j}, v{S0+j} row_ror:8 row_mask:0xf bank_mask:0x3")
        for j in range(4): a(f"v_add_f32_dpp v{S0+j}, v{S1+j}, v{S1+j} row_ror:8 row_mask:0xf bank_mask:0xc")
        for m in ("row_half_mirror", "quad_perm:[1,0,3,2]", "quad_perm:[2,3,0,1]"):
            for j in range(4): a(f"v_add_f32_dpp v{S0+j}, v{S0+j}, v{S0+j} {m} row_mask:0xf bank_mask:0xf")
        a("v_cvt_pk_bf16_f32 v52, v24, v25\nv_cvt_pk_bf16_f32 v53, v26, v27")
        a("v_lshlrev_b32 v48, 16, v52\nv_and_b32 v49, s90, v52\nv_lshlrev_b32 v50, 16, v53\nv_and_b32 v51, s90, v53")
        for j in range(4): a(f"v_mul_f32 v{48+j}, s89, v{48+j}")
        a("v_cvt_pk_bf16_f32 v52, v48, v49\nv_cvt_pk_bf16_f32 v53, v50, v51")
        a("v_lshlrev_b32 v54, 16, v52\nv_and_b32 v55, s90, v52\nv_lshlrev_b32 v56, 16, v53\nv_and_b32 v57, s90, v53")
        a("v_max3_f32 v19, v54, v55, v56\nv_max3_f32 v19, v19, v57, v14")
        a("v_mov_b32 v62, v19\nv_permlane16_swap_b32 v19, v62\nv_max_f32 v19, v19, v62")
        a("v_mov_b32 v62, v19\nv_permlane32_swap_b32 v19, v62\nv_max_f32 v14, v19, v62")
        a("v_mul_f32 v15, s88, v14\nv_sub_f32 v18, v16, v15")
        for j in range(4): a(f"v_fma_f32 v{54+j}, v{54+j}, s88, -v15")
        a("v_exp_f32 v18, v18")
        for j in range(4): a(f"v_exp_f32 v{54+j}, v{54+j}")
        a("v_mov_b32 v16, v15")
        for j in range(4): a(f"v_cvt_pk_bf16_f32 v{58+j}, v{54+j}, v{54+j}")
        a("v_add_f32 v19, v54, v55\nv_add_f32 v62, v56, v57")
        for r in range(4): a(f"v_mul_f32 v{20+r}, v{20+r}, v18")
        a("v_add_f32 v19, v19, v62")
        for j in range(4): buildB(32 + 4 * j, 58 + j)
        a("v_fma_f32 v17, v17, v18, v19")
        if exact0 and s < NS - L: a(f"s_cmp_lt_u32 s66, {NS}\ns_cbranch_scc1 L_vw0_{s}")
        a(f"s_waitcnt vmcnt({8*(L-1) if vlag else 8*L-4})")
        if exact0 and s < NS - L: a(f"L_vwb_{s}:")
        for j in range(4): mfma(20, f"a[{vb+4*j}:{vb+4*j+3}]", 32 + 4 * j)
        if not vlag:
            if s < NS - L: a(f"s_cmp_lt_u32 s66, {NS}\ns_cbranch_scc1 L_skipV_{s}")
            vload(rs, "s65")
            if s < NS - L: a(f"L_skipV_{s}:")
        a("s_add_u32 s66, s66, 1")
    a("s_branch L_loop")
    if exact0:
        for s in range(NS - L):
            a(f"L_kw0_{s}:\ns_waitcnt vmcnt({8*(NS-1-s)+4})\ns_branch L_kwb_{s}")
            a(f"L_vw0_{s}:\ns_waitcnt vmcnt({8*(NS-1-s)})\ns_branch L_vwb_{s}")
    for s in range(NS):
        a(f"L_dyn_{s}:")
        a("s_sub_u32 s7, s6, s67\ns_and_b32 s7, s7, -4\nv_mov_b32 v62, s7\ns_and_b32 s6, s6, 3\ns_lshl_b32 s59, s6, 12\ns_mov_b32 s82, 0")
        a(f"L_dynsp_{s}:")
        a(f"ds_read_b32 v63, v62 offset:{DQ}\ns_waitcnt lgkmcnt(0)\nv_readfirstlane_b32 s65, v63")
        a(f"s_cmp_eq_u32 s65, -1\ns_cbranch_scc1 L_dynw_{s}")
        if wodefer == "seen":
            a(f"s_add_u32 s65, s65, s59\ns_cmp_ge_u32 s65, s64\ns_cbranch_scc0 L_back_{s}")
            a(f"v_mov_b32 v62, 0\nv_mov_b32 v63, 1\ns_mov_b64 exec, 1\nds_add_u32 v62, v63 offset:{FLG+12}\ns_mov_b64 exec, -1\ns_branch L_back_{s}")
        else:
            a(f"s_add_u32 s65, s65, s59\ns_branch L_back_{s}")
        a(f"L_dynw_{s}:")
        a(f"s_sleep 1\ns_add_u32 s82, s82, 1\ns_cmp_lt_u32 s82, {SPIN_LIMIT:#x}\ns_cbranch_scc1 L_dynsp_{s}\ns_branch L_exit")
    c("---- end of the stream: per-wave partials to LDS, wave 4 combines them and publishes the workgroup partial ----")
    a("L_loop_end:")
    if dstamp:
        a("s_waitcnt vmcnt(0)")
        dst(4); dst(5, neg=True)
    stamp(3)
    if prog:
        a(f"s_lshl_b32 s6, s58, 7\nv_lshlrev_b32 v62, 2, v0\nv_add_u32 v63, s6, v62\nds_read_b32 v63, v63 offset:{PRG}\ns_waitcnt lgkmcnt(0)")
        a(f"s_lshl_b32 s6, s2, 2\ns_add_u32 s6, s6, s58\ns_lshl_b32 s6, s6, 7\ns_add_u32 s6, s6, {DBGO:#x}\ns_mov_b64 exec, 0xffffffff")
        a("buffer_store_dword v63, v62, s[40:43], s6 offen\ns_mov_b64 exec, -1")
    allrow_op("v_add_f32", 17, 62)
    a(f"s_lshl_b32 s6, s58, 10\nv_add_u32 v62, s6, v1")
    a(f"ds_write_b128 v62, v[20:23] offset:{ACC}")
    a("v_bfe_u32 v63, v0, 3, 1\nv_lshlrev_b32 v63, 3, v63\ns_lshl_b32 s6, s58, 4\nv_add_u32 v62, s6, v63")
    a(f"s_mov_b64 exec, 0x101\nds_write_b64 v62, v[16:17] offset:{MLL}\ns_mov_b64 exec, -1")
    a("s_waitcnt lgkmcnt(0)\ns_barrier")
    a("s_cmp_eq_u32 s58, 0\ns_cbranch_scc0 L_exit")
    stamp(4)
    if dynwo: a(f"v_mov_b32 v57, 0\nds_read_b32 v56, v57 offset:{FLG+20}")
    for w in range(4):
        a(f"ds_read_b128 v[{32+4*w}:{35+4*w}], v1 offset:{ACC + 1024*w}")
        a(f"ds_read_b64 v[{48+2*w}:{49+2*w}], v63 offset:{MLL + 16*w}")
    a("s_waitcnt lgkmcnt(0)")
    a("v_max3_f32 v16, v48, v50, v52\nv_max_f32 v16, v16, v54")
    for w in range(4): a(f"v_sub_f32 v{24+w}, v{48+2*w}, v16")
    for w in range(4): a(f"v_exp_f32 v{24+w}, v{24+w}")
    a("v_mul_f32 v17, v24, v49\nv_fmac_f32 v17, v25, v51\nv_fmac_f32 v17, v26, v53\nv_fmac_f32 v17, v27, v55")
    for r in range(4):
        a(f"v_mul_f32 v{20+r}, v24, v{32+r}")
        for w in range(1, 4): a(f"v_fmac_f32 v{20+r}, v{24+w}, v{32+4*w+r}")
    a(f"s_mul_i32 s6, s56, 1152\ns_add_u32 s6, s6, {AP:#x}")
    a(f"buffer_store_dwordx4 v[20:23], v1, s[40:43], s6 offen {hpol}")
    a("s_mov_b64 exec, 0x101\nbuffer_store_dwordx2 v[16:17], v63, s[40:43], s6 offen offset:1024 " + hpol + "\ns_mov_b64 exec, -1")
    stamp(5)
    if wodefer == "post":
        if dynwo: a("v_readfirstlane_b32 s55, v56\ns_cmp_lt_u32 s55, 9\ns_cbranch_scc0 L_exit\ns_barrier")
        else: a("s_cmp_lt_u32 s5, 9\ns_cbranch_scc0 L_exit\ns_barrier")

    a("L_exit:")
    if stamps:
        a("s_memrealtime s[84:85]\ns_waitcnt lgkmcnt(0) vmcnt(0)")
        a("s_getreg_b32 s6, hwreg(HW_REG_XCC_ID)")
        a(f"s_lshl_b32 s7, s2, 3\ns_add_u32 s7, s7, s3\ns_mul_i32 s7, s7, 48\ns_add_u32 s7, s7, {STAMP:#x}")
        for k in range(8): a(f"v_mov_b32 v{100+k}, s{92+k}")
        a("v_mov_b32 v108, s84\nv_mov_b32 v109, s6\nv_mov_b32 v110, 0\nv_mov_b32 v111, 0\nv_mov_b32 v99, 0")
        a("s_mov_b64 exec, 1")
        a("buffer_store_dwordx4 v[100:103], v99, s[40:43], s7 offen\nbuffer_store_dwordx4 v[104:107], v99, s[40:43], s7 offen offset:16\nbuffer_store_dwordx4 v[108:111], v99, s[40:43], s7 offen offset:32")
    a("L_end:")
    a("s_endpgm")
    hdr = header(256, 512, LDS_SIZE, comments=open("parallel_sum__gqa_block_cached__glu_gated_geglu__decode.s.ref").read().split("; Override")[0].strip().split("\n") + DESC.strip().split("\n"))
    accum = max(128, 64 + 16 * NS)
    assert accum + max(16 * NS, 72) <= 256
    return a.text(hdr, footer(256, 102, accum), verbose=True)

if __name__ == "__main__":
    kw = {}
    for arg in sys.argv[2:]:
        k, v = arg.split("="); kw[k] = eval(v)
    open(sys.argv[1], "w").write(gen(**kw))
```
